```python
import torch

def _softmax(x, axis=-1):
    return torch.softmax(x, dim=axis)

def _gelu(x):
    return torch.nn.functional.gelu(x, approximate='tanh')

def _silu(x):
    return torch.nn.functional.silu(x)

def _sigmoid(x):
    return torch.sigmoid(x)

def _layernorm(x, axis=-1, eps=1e-05):
    m = x.mean(dim=axis, keepdim=True)
    v = x.var(dim=axis, keepdim=True, unbiased=False)
    return (x - m) / torch.sqrt(v + eps)

def _scatter_add(tgt, idx, src, axis=0):
    return tgt.clone().index_add_(axis, idx, src)

def _segment_sum(src, seg, n):
    out = torch.zeros((n,) + src.shape[1:], dtype=src.dtype)
    return out.index_add_(0, seg, src)

def _pad(x, pw):
    flat = tuple((v for pair in reversed(pw) for v in pair))
    return torch.nn.functional.pad(x, flat)
kernel_name = 'recurrent_scan__memory_aug_recurrent_mem_tr__geglu_ffn__prompt'

def setup_inputs():

    _w = lambda a: (lambda t: t.to(torch.bfloat16) if t.is_floating_point() else t)(torch.as_tensor(a))

    def _A_setup():
        B, S, Dm = (1, 2048, 640)
        H, Dh = (32, 128)
        M, seg = (8, 32)
        seg = min(seg, S)
        S = S // seg * seg
        return {'x': _w((lambda *s: torch.randn(*s, dtype=torch.bfloat16) * 0.05)(B, S, Dm)), 'mem0': _w((lambda *s: torch.randn(*s, dtype=torch.bfloat16) * 0.2)(B, M, Dm)), 'Wq': _w((lambda *s: torch.randn(*s, dtype=torch.bfloat16) * 0.8)(Dm, H, Dh) * Dm ** (-0.5)), 'Wk': _w((lambda *s: torch.randn(*s, dtype=torch.bfloat16) * 0.8)(Dm, H, Dh) * Dm ** (-0.5)), 'Wv': _w((lambda *s: torch.randn(*s, dtype=torch.bfloat16) * 0.2)(Dm, H, Dh) * Dm ** (-0.5)), 'Wo': _w((lambda *s: torch.randn(*s, dtype=torch.bfloat16) * 0.2)(H, Dh, Dm) * (H * Dh) ** (-0.5)), 'seg_len': seg}
    _A_in = _A_setup()

    def _B_setup():
        B, S, D, F = (1, 2048, 640, 1728)
        return {'x': _w((lambda *s: torch.randn(*s, dtype=torch.bfloat16) * 0.05)(B, S, D)), 'w_gate': _w((lambda *s: torch.randn(*s, dtype=torch.bfloat16) * 0.1)(D, F)), 'w_up': _w((lambda *s: torch.randn(*s, dtype=torch.bfloat16) * 0.1)(D, F)), 'w_down': _w((lambda *s: torch.randn(*s, dtype=torch.bfloat16) * 0.1)(F, D))}
    _B_in = _B_setup()
    return {'A_x': _A_in['x'], 'A_mem0': _A_in['mem0'], 'A_Wq': _A_in['Wq'], 'A_Wk': _A_in['Wk'], 'A_Wv': _A_in['Wv'], 'A_Wo': _A_in['Wo'], 'A_seg_len': _A_in['seg_len'], 'B_x': _B_in['x'], 'B_w_gate': _B_in['w_gate'], 'B_w_up': _B_in['w_up'], 'B_w_down': _B_in['w_down']}

def reference(A_x, A_mem0, A_Wq, A_Wk, A_Wv, A_Wo, A_seg_len, B_x, B_w_gate, B_w_up, B_w_down):

    def _A_ref(x, mem0, Wq, Wk, Wv, Wo, seg_len):
        B, S, Dm = x.shape
        H, Dh = (Wq.shape[1], Wq.shape[2])
        M = mem0.shape[1]
        scale = Dh ** (-0.5)
        n_seg = S // seg_len
        L = M + seg_len
        idx = torch.arange(L)
        mask = (idx[:, None] < M) | (idx[:, None] >= idx[None, :])
        mem = mem0
        outs = []
        for s in range(n_seg):
            xs = x[:, s * seg_len:(s + 1) * seg_len, :].clone()
            h = torch.concatenate([mem, xs], axis=1)
            q = torch.einsum('btd,dhe->bhte', h, Wq)
            k = torch.einsum('btd,dhe->bhte', h, Wk)
            v = torch.einsum('btd,dhe->bhte', h, Wv)
            scores = torch.einsum('bhqe,bhke->bhqk', q, k) * scale
            scores = torch.where(mask[None, None], scores, -1000000000.0)
            p = _softmax(scores, axis=-1)
            o = torch.einsum('bhqk,bhke->bhqe', p, v)
            o = torch.einsum('bhte,hed->btd', o, Wo)
            mem = o[:, :M, :].clone()
            outs.append(o[:, M:, :])
        return torch.concatenate(outs, axis=1)

    def _B_ref(x, w_gate, w_up, w_down):
        return _gelu(x @ w_gate) * (x @ w_up) @ w_down
    x = A_x
    xn = _layernorm(x, axis=-1)
    s = _A_ref(xn, A_mem0, A_Wq, A_Wk, A_Wv, A_Wo, A_seg_len)
    g = _silu(_B_ref(xn, B_w_gate, B_w_up, B_w_down))
    return x + s * g
```

```python
from kfw import K
from layout import *
def ln_kernel(k, name):
    k.raw(f'.globl {name}\n.p2align 8\n.type {name},@function\n{name}:')
    k('s_cmp_ge_u32 s2, 128\ns_cbranch_scc1 LN_done')
    k(f's_load_dwordx2 s[4:5], s[0:1], {KA_X}\ns_load_dwordx2 s[8:9], s[0:1], {KA_WS}')
    k('s_mov_b32 s6, 2621440\ns_mov_b32 s7, 0x20000\ns_mov_b32 s10, 0x10000000\ns_mov_b32 s11, 0x20000')
    k('v_lshrrev_b32 v1, 4, v0\ns_lshl_b32 s3, s2, 4\nv_add_u32 v1, s3, v1\nv_and_b32 v2, 15, v0')
    k('v_mul_u32_u24 v3, 1280, v1\nv_lshl_add_u32 v3, v2, 4, v3')
    k.wait(lg=0)
    for i in range(5): k(f'buffer_load_dwordx4 v[{8+4*i}:{11+4*i}], v3, s[4:7], 0 offen offset:{256*i}')
    k('v_lshlrev_b32 v4, 4, v0\ns_lshl_b32 s12, s2, 12\nv_add_u32 v4, s12, v4')
    k('v_mov_b64 v[72:73], 0\nv_mov_b64 v[74:75], 0\nv_mov_b32 v76, -1\nv_mov_b32 v77, -1\nv_mov_b32 v78, -1\nv_mov_b32 v79, -1')
    nfl = (FL_END - WS_FLG + 4095) // 4096
    nsl = (64*SL2 + 4095) // 4096
    assert nfl + nsl + 8 <= 128
    k(f's_mov_b32 s13, {WS_FLG}\ns_cmp_lt_u32 s2, {nfl}\ns_cbranch_scc1 LN_z')
    k(f's_mov_b32 s13, {WS_SLAB - 4096*nfl}\ns_cmp_lt_u32 s2, {nfl+nsl}\ns_cbranch_scc1 LN_z')
    k(f's_cmp_ge_u32 s2, {nfl+nsl+8}\ns_cbranch_scc1 LN_nz')
    k(f's_sub_u32 s14, s2, {nfl+nsl}\ns_and_b32 s15, s14, 1\ns_lshl_b32 s15, s15, 12\ns_bfe_u32 s16, s14, 0x10001\ns_lshl_b32 s16, s16, 15\ns_add_u32 s15, s15, s16')
    k(f's_cmp_ge_u32 s14, 4\ns_cselect_b32 s13, {WS_XG - WS_AG}, 0\ns_add_u32 s13, s13, {WS_AG}\ns_add_u32 s13, s13, s15\ns_sub_u32 s13, s13, s12')
    k('v_mov_b64 v[72:73], v[76:77]\nv_mov_b64 v[74:75], v[76:77]')
    k.label('LN_z')
    k('v_add_u32 v4, s13, v4')
    k('buffer_store_dwordx4 v[72:75], v4, s[8:11], 0 offen')
    k.label('LN_nz')
    k.vm = [e for e in k.vm if e]
    for j in range(20):
        k(f'v_lshlrev_b32 v{32+2*j}, 16, v{8+j}\nv_and_b32 v{33+2*j}, 0xffff0000, v{8+j}')
    def rowsum(r):
        for sh in (8, 4, 2, 1): k(f'v_add_f32_dpp v{r}, v{r}, v{r} row_ror:{sh} row_mask:0xf bank_mask:0xf')
    k('v_add_f32 v5, v32, v33')
    for j in range(2, 40): k(f'v_add_f32 v5, v5, v{32+j}')
    rowsum(5)
    k('s_mov_b32 s12, 0x3acccccd')
    k('v_mul_f32 v5, s12, v5')
    k('v_sub_f32 v7, v32, v5\nv_mul_f32 v6, v7, v7')
    for j in range(1, 40): k(f'v_sub_f32 v7, v{32+j}, v5\nv_fmac_f32 v6, v7, v7')
    rowsum(6)
    rb = lambda r: k(f'v_cvt_pk_bf16_f32 v{r}, v{r}, v{r}\nv_lshlrev_b32 v{r}, 16, v{r}')
    k('v_mul_f32 v6, s12, v6'); rb(6); rb(5)
    k('v_add_f32 v6, 0x3727c5ac, v6'); rb(6)
    k('v_sqrt_f32 v6, v6'); rb(6)
    k('v_rcp_f32 v7, v6')
    k('v_fma_f32 v6, -v6, v7, 1.0\nv_fmac_f32 v7, v6, v7')
    for j in range(20):
        a, b = 32 + 2*j, 33 + 2*j
        k(f'v_sub_f32 v{a}, v{a}, v5\nv_sub_f32 v{b}, v{b}, v5\nv_cvt_pk_bf16_f32 v{a}, v{a}, v{b}')
        k(f'v_and_b32 v{b}, 0xffff0000, v{a}\nv_lshlrev_b32 v{a}, 16, v{a}\nv_mul_f32 v{a}, v{a}, v7\nv_mul_f32 v{b}, v{b}, v7')
        k(f'v_cvt_pk_bf16_f32 v{8+j}, v{a}, v{b}')
    k('v_lshrrev_b32 v4, 5, v1\nv_mul_u32_u24 v4, 40960, v4\nv_and_b32 v1, 31, v1\nv_lshl_add_u32 v4, v1, 4, v4')
    k('v_lshrrev_b32 v1, 1, v2\nv_lshl_add_u32 v4, v1, 10, v4\nv_and_b32 v1, 1, v2\nv_lshl_add_u32 v4, v1, 9, v4')
    for i in range(5):
        k(f's_mov_b32 s12, {WS_XN + 8192*i}\nbuffer_store_dwordx4 v[{8+4*i}:{11+4*i}], v4, s[8:11], s12 offen')
    k.label('LN_done')
    k('s_endpgm')
```

```python
from kfw import K
from layout import *
OPT = {}
STAMP = False
vL16, vAF, vLW, vRS, vAGS, vOW, vKV, vIDX = range(8)
vPZ, vZ1, vZ2, vPZ2, vPAT = 8, 9, 10, 11, 12
vM, vT1, vT2 = 13, 14, 15
AW, QA, KA, VA, VT, QB, KF, X, KT, SLa, SLb = 16, 28, 36, 44, 52, 60, 64, 68, 72, 80, 88
QK8 = QB
RES0 = 96
LDS_SMT, LDS_SMM, LDS_W = 10240, 14336, 16384
NLDS = 18
def vr(b, n): return f'v[{b}:{b+n-1}]'
sJ, sW, sG, sSTEP, sTAG, sKO, sVO, sSL1, sSL0 = 3, 4, 5, 20, 21, 22, 23, 24, 25
sRS = 26
sRING, sREARM, sE1, sE0, sL1, sL0, sAGW, sXGW, sAGB, sXGB, sXGO = 30, 31, 32, 33, 34, 35, 36, 37, 38, 39, 6
sBUD, sEXP = 40, 41
sMB0, sMSEL, sMS0, sMB1 = 42, 44, 52, 54
sW1024, sW4, sW256, sW512, sC, sPRO, sXP, sEXN = 56, 57, 58, 59, 60, 61, 62, 63
sT = 64
sONE = 98
sKVF, sKVB = 7, 96
WSR, TR, DBR = 's[8:11]', 's[12:15]', 's[16:19]'

SEQ1 = [(m, p, te) for p in range(5) for (m, te) in (('q', 0), ('q', 1), ('k', 0), ('k', 1), ('v', 0), ('v', 1))]
SEQ2 = [(m, p, te) for p in range(5, 10) for (m, te) in (('q', 0), ('q', 1), ('k', 0), ('k', 1))]
QKSEQ = SEQ1 + SEQ2
VSEQ = [('v', p, te) for p in range(5, 10) for te in range(2)]
OSEQ = [('o', tt, k2) for tt in (4, 0, 1, 2, 3) for k2 in range(2)]
PLAN = {}
def plan():
    ld = [(QKSEQ[i], QK8 if n % 2 == 0 else SLa) for n, i in enumerate((3, 8, 12, 16, 20, 24, 28, 32, 36, 40, 44, 48))]
    ld += [(VSEQ[1], SLb), (VSEQ[3], SLa), (VSEQ[4], SLb), (VSEQ[6], SLa), (VSEQ[7], SLb), (VSEQ[9], SLa)]
    assert len(ld) == NLDS
    for i, (f, r) in enumerate(ld): PLAN[f] = ('lds', i, r)
    res = [f for f in QKSEQ + VSEQ + OSEQ if f not in PLAN]
    assert len(res) == 52
    a, b = ('o', 2, 1), ('o', 3, 1)
    res = [f for f in res if f not in (a, b)] + [a, b]
    for i, f in enumerate(res):
        PLAN[f] = ('res', i, f'a[{8*i}:{8*i+7}]' if i < 32 else vr(RES0 + 8*(i-32), 8))
plan()
def breg(f):
    p = PLAN[f]
    return p[2] if p[0] == 'res' else vr(p[2], 8)
NEXT, FIRST, _last = {}, {}, {}
for f in QKSEQ + VSEQ + OSEQ:
    if PLAN[f][0] == 'lds':
        r = PLAN[f][2]
        if r not in FIRST: FIRST[r] = f
        else: NEXT[_last[r]] = f
        _last[r] = f

def load_frag(k, f, side=False):
    e = k.side if side else k
    src, i, r = PLAN[f]
    e(f'ds_read_b128 {vr(r,4)}, v{vLW} offset:{i*2048}')
    e(f'ds_read_b128 {vr(r+4,4)}, v{vLW} offset:{i*2048+1024}')
def smf(k, acc, areg, f):
    k(f'v_smfmac_f32_16x16x64_bf16 {vr(acc,4)}, {vr(areg,4)}, {breg(f)}, v{vIDX}')
    if f in NEXT: load_frag(k, NEXT[f], True)
def zero(k, b, n):
    for i in range(0, n, 2): k(f'v_mov_b64 {vr(b+i,2)}, 0')
def zero16(k, b):
    k(f'v_mfma_f32_32x32x8_bf16 {vr(b,16)}, {vr(vPZ,2)}, {vr(vZ2,2)}, 0')
def wait_tag(k, name):
    for q, kw in ((k.vm, 'vm'), (k.lg, 'lg')):
        n = k._need(q, {name})
        if n is not None: k.wait(**{kw: n})
def NT(): return OPT.get('kvbits', ' sc1')
def stamp(k, i):
    if STAMP: k(f's_memtime s[{72+2*i}:{73+2*i}]')
def aread(p, slot): return f'ds_read_b128 {vr(AW+4*slot,4)}, v{vAF} offset:{p*1024}'
ACCQ = {'q': QA, 'k': KA, 'v': VA}

class VFill:
    def __init__(self, k): self.k = k; self.i = 0
    def __call__(self, n=1, g=1):
        k = self.k
        for _ in range(n):
            if self.i >= len(VSEQ): return
            f = VSEQ[self.i]; p, te = f[1], f[2]
            slot = (p + 5) % 3
            smf(k, VA + 4*te, AW + 4*slot, f)
            if te == 1 and p + 3 < 10: k.sq.insert(0, (aread(p + 3, slot), None))
            k.gap(g)
            self.i += 1

def body(k, role, sc, tagL):
    S = ' sc1' if sc else ''
    L = lambda s: f'{s}_{tagL}'
    def cut(name):
        if OPT.get('upto') == name:
            k.drain(); k.flush_hazards(); k(f's_branch {L("R_solo")}')
    def gather(land, s1, s0, a16):
        k(f'buffer_load_dwordx4 {vr(land,4)}, v{vL16}, {WSR}, s{s1} offen sc1')
        k(f'buffer_load_dwordx4 {vr(land+4,4)}, v{a16}, {WSR}, s{s0} offen sc1')
    def chk8(r):
        return [f'v_max3_u32 v{vT1}, v{r}, v{r+1}, v{r+2}', f'v_max3_u32 v{vT1}, v{vT1}, v{r+3}, v{r+4}', f'v_max3_u32 v{vT1}, v{vT1}, v{r+5}, v{r+6}',
                f'v_max_u32 v{vT1}, v{vT1}, v{r+7}', f'v_cmp_eq_u32 vcc, -1, v{vT1}']
    def put(land, off):
        k(f'ds_write_b128 v{vT2}, {vr(land,4)} offset:{off}')
        k('s_mov_b64 exec, 0xffff'); k(f'ds_write_b128 v{vM}, {vr(land+4,4)} offset:{off}'); k('s_mov_b64 exec, -1')
    k.label(L('R_top'))
    stamp(k, 0)
    for p in range(3): k(aread(p, p))
    LI, LC = OPT.get('li', -2), OPT.get('lc', 17)
    LB = LC + OPT.get('lbd', 10)
    F = OPT.get('faridx', LB + 1)
    if LI == -1: gather(SLb, sL1, sL0, X)
    cut('top')
    held = []
    for idx, f in enumerate(QKSEQ):
        m, p, te = f
        smf(k, ACCQ[m] + 4*te, AW + 4*(p % 3), f)
        if idx + 1 == len(QKSEQ) or QKSEQ[idx+1][1] != p:
            nk = p + 3 if p + 3 < 10 else p + 3 - 5
            if 5 <= p + 3 and idx < LB: held.append(aread(nk, p % 3))
            else: k.sq.insert(0, (aread(nk, p % 3), None))
        if idx == LB:
            wait_tag(k, 'lw'); k('s_barrier')
            for h in reversed(held): k.sq.insert(0, (h, None))
            if OPT.get('dump') is not None:
                k(f's_cmp_lg_u32 s{sSTEP}, {OPT["dump"]}\ns_cbranch_scc1 {L("R_nod")}\ns_cmp_lg_u32 s{sJ}, 0\ns_cbranch_scc1 {L("R_nod")}')
                st_ = k.state()
                k(f's_mul_i32 s{sT}, s{sG}, 10240\ns_add_u32 s{sT}, s{sT}, {WS_MEMH}')
                for i in range(3):
                    k(f'ds_read_b128 v[248:251], v{vT2} offset:{4096*i}')
                    k(f'buffer_store_dwordx4 v[248:251], v{vT2}, {WSR}, s{sT} offen')
                    k(f's_add_u32 s{sT}, s{sT}, 4096')
                    k.force_wait(vm=0, lg=0)
                k.set_state(st_)
                k.label(L('R_nod'))
        k.gap(1)
        if idx == LI: gather(SLb, sL1, sL0, X)
        if LC <= idx < LC + 5: k(chk8(SLb)[idx - LC])
        if idx == LC + 5:
            k(f's_cbranch_vccnz {L("R_slowl")}')
            k.label(L('R_contl'))
            k(f'ds_write_b128 v{vT2}, {vr(SLb,4)} offset:5120')
        if idx == LC + 6:
            k('s_mov_b64 exec, 0xffff'); k(f'ds_write_b128 v{vM}, {vr(SLb+4,4)} offset:5120'); k('s_mov_b64 exec, -1')
        if idx == LC + 7:
            k(f'ds_read_b128 {vr(X,4)}, v{vT2} offset:{LDS_SMT}'); k.lg[-1] |= {'lw'}
            load_frag(k, FIRST[SLb], True)
        if idx == F:
            if not OPT.get('nofar'):
                k(f'buffer_load_dwordx4 {vr(VT,4)}, v{vKV}, {WSR}, s{sVO} offen{NT()}')
                k(f'buffer_load_dwordx4 {vr(VT+4,4)}, v{vKV}, {WSR}, s{sVO} offen offset:128{NT()}')
        if idx == F + 1 and not OPT.get('noexp'):
            k(f'buffer_store_dwordx4 {vr(X,4)}, v{vT2}, {WSR}, s{sEXP} offen sc1')
        if idx == F + 2 and role in '01':
            k(f'v_mov_b32 v{vT1}, -1')
        if idx == F + 3 and role in '01':
            k(f's_add_u32 s{sT}, s{sREARM}, s{sAGB}\ns_add_u32 s{sT+1}, s{sREARM}, s{sXGB}')
            k(f'buffer_store_dword v{vT1}, v{vAGS}, {WSR}, s{sT} offen{S}')
            k(f'buffer_store_dword v{vT1}, v{vAGS}, {WSR}, s{sT+1} offen sc1')
        if idx == F + 3 and role == '3' and not OPT.get('noflag'):
            k(f's_mov_b64 exec, 1\nbuffer_store_dword v{vRS}, off, {WSR}, s{sPRO} sc1\ns_mov_b64 exec, -1')
        if role == '3' and OPT.get('kvflag'):
            if idx == F - 2: k(f'v_and_b32 v{vT1}, 16, v{vL16}')
            if idx == F - 1: k(f'v_lshlrev_b32 v{vT1}, 7, v{vT1}')
            if idx == F + 2: k(f'buffer_load_dword v{vAGS}, v{vT1}, {WSR}, s{sKVF} offen sc1')
        if idx == 41: k(f'v_cndmask_b32 v{vPZ}, v{vZ1}, v{vPAT}, s[{sMS0}:{sMS0+1}]')
        if idx == 42: k(f'v_cndmask_b32 v{vPZ2}, v{vZ1}, v{vPAT}, s[{sMS0}:{sMS0+1}]')
        if idx == 43: k(f'v_add_u32 v{vT1}, s{sW4}, v{vL16}')
        cut(f'q{idx}')
    cut('qk')
    stamp(k, 1)
    V = VFill(k)
    def half(A, x):
        k(f'v_add_f32 v{A}, v{A}, v{A+2}\nv_add_f32 v{A+1}, v{A+1}, v{A+3}')
        k(f'v_cvt_pk_bf16_f32 v{x}, v{A}, v{A+1}')
    V(2)
    half(QA, X); k.gap(); half(QA+4, X+1); k.gap(); half(KA, X+2)
    k(f'v_mfma_f32_16x16x16_bf16 {vr(QA,4)}, {vr(X,2)}, {vr(vPZ,2)}, 0')
    k(f'v_add_f32 v{KA+4}, v{KA+4}, v{KA+6}\nv_add_f32 v{KA+5}, v{KA+5}, v{KA+7}')
    k(f'v_mfma_f32_16x16x16_bf16 {vr(QA+4,4)}, {vr(X,2)}, {vr(vZ2,2)}, 0')
    k(f'v_cvt_pk_bf16_f32 v{X+3}, v{KA+4}, v{KA+5}')
    V(1)
    k(f'v_mfma_f32_16x16x16_bf16 {vr(KA,4)}, {vr(X+2,2)}, {vr(vPZ,2)}, 0')
    k.gap()
    k(f'v_mfma_f32_16x16x16_bf16 {vr(KA+4,4)}, {vr(X+2,2)}, {vr(vZ2,2)}, 0')
    cut('tr')
    for i in range(4): k(f'v_cvt_pk_bf16_f32 v{QB+i}, v{QA+2*i}, v{QA+2*i+1}')
    V(1)
    k(f'v_mfma_f32_16x16x32_bf16 {vr(QA,4)}, {vr(KT,4)}, {vr(QB,4)}, 0')
    k(f'v_cvt_pk_bf16_f32 v{KF}, v{KA}, v{KA+1}\nv_cvt_pk_bf16_f32 v{KF+1}, v{KA+2}, v{KA+3}')
    k(f'v_mfma_f32_16x16x32_bf16 {vr(QA+4,4)}, {vr(KT+4,4)}, {vr(QB,4)}, 0')
    k(f'v_cvt_pk_bf16_f32 v{KF+2}, v{KA+4}, v{KA+5}\nv_cvt_pk_bf16_f32 v{KF+3}, v{KA+6}, v{KA+7}')
    k.gap(); k.gap()
    k(f'v_mfma_f32_16x16x32_bf16 {vr(KA,4)}, {vr(KF,4)}, {vr(QB,4)}, 0')
    if not OPT.get('nofar'):
        k(f'buffer_load_dwordx4 {vr(KT,4)}, v{vKV}, {WSR}, s{sKO} offen{NT()}')
        k(f'buffer_load_dwordx4 {vr(KT+4,4)}, v{vKV}, {WSR}, s{sKO} offen offset:128{NT()}')
    cut('s')
    for i in range(4): k(f'v_cndmask_b32 v{QA+i}, v{QA+i}, v{QA+4+i}, s[{sMB1}:{sMB1+1}]')
    k(f'ds_write_b128 v{vT2}, {vr(QA,4)} offset:{LDS_SMT}')
    k(f'v_cndmask_b32 v{KA}, v{KA}, v{KA+1}, s[{sMB1}:{sMB1+1}]')
    k(f'ds_write_b32 v{vT1}, v{KA} offset:{LDS_SMM}')
    k.lg[-1] = {'sw'}
    V(OPT.get('w1', 3), 2)
    wait_tag(k, 'sw')
    k('s_barrier')
    cut('b2')
    k(f'ds_read_b128 {vr(X,4)}, v{vL16} offset:{LDS_SMM}')
    for i, D in enumerate((QA, QA+4, KA, KA+4)):
        k(f'ds_read_b128 {vr(D,4)}, v{vL16} offset:{LDS_SMT+1024*i}')
    while V.i < 10:
        V(1)
        if V.i >= 9: k(f'v_mov_b64 {vr(SLb+2*(V.i-9),2)}, s[{sONE}:{sONE+1}]')
    k(f'v_add_f32 v{X}, v{X}, v{X+1}\nv_add_f32 v{X+2}, v{X+2}, v{X+3}')
    for i in range(4): k(f'v_add_f32 v{QA+i}, v{QA+i}, v{QA+4+i}')
    k(f'v_add_f32 v{X}, v{X}, v{X+2}')
    for i in range(4): k(f'v_add_f32 v{KA+i}, v{KA+i}, v{KA+4+i}')
    for i in range(4): k(f'v_add_f32 v{QA+i}, v{QA+i}, v{KA+i}')
    cut('sum')
    k(f'v_max3_f32 v{vM}, v{QA}, v{QA+1}, v{X}')
    k(f'v_max3_f32 v{vM}, v{QA+2}, v{QA+3}, v{vM}')
    k(f'v_add_f32 v{VA}, v{VA}, v{VA+2}\nv_add_f32 v{VA+1}, v{VA+1}, v{VA+3}')
    k(f'v_max_f32_dpp v{vM}, v{vM}, v{vM} quad_perm:[2,3,0,1] row_mask:0xf bank_mask:0xf')
    k(f'v_mov_b32 v{vT1}, v{vM}')
    k(f'v_add_f32 v{VA+4}, v{VA+4}, v{VA+6}\nv_add_f32 v{VA+5}, v{VA+5}, v{VA+7}')
    k(f'v_permlane16_swap_b32 v{vM}, v{vT1}')
    k(f'v_max_f32 v{vM}, v{vM}, v{vT1}')
    k(f'v_mov_b32 v{vT1}, v{vM}')
    k(f'v_cvt_pk_bf16_f32 v{X+2}, v{VA}, v{VA+1}\nv_cvt_pk_bf16_f32 v{X+3}, v{VA+4}, v{VA+5}')
    k(f'v_permlane32_swap_b32 v{vM}, v{vT1}')
    k(f'v_max_f32 v{vM}, v{vM}, v{vT1}')
    cut('max')
    k(f'v_mul_f32 v{vM}, s{sC}, v{vM}')
    for r in (X, QA, QA+1, QA+2, QA+3): k(f'v_fma_f32 v{r}, s{sC}, v{r}, -v{vM}')
    for i, r in enumerate((X, QA, QA+1, QA+2, QA+3)): k(f'v_exp_f32 v{r}, v{r}')
    k(f'v_mov_b32_dpp v{vT1}, v{X} quad_perm:[2,3,0,1] row_mask:0xf bank_mask:0xf')
    k(f'v_cvt_pk_bf16_f32 v{QB}, v{QA}, v{QA+1}')
    k(f'v_cvt_pk_bf16_f32 v{QB+1}, v{QA+2}, v{QA+3}')
    k(f'v_cvt_pk_bf16_f32 v{vPZ}, v{X}, v{vT1}')
    k(f'v_cvt_pk_bf16_f32 v{vPZ2}, v{X}, v{vT1}')
    k(f'v_mov_b32_dpp v{QB+2}, v{QB} quad_perm:[2,3,0,1] row_mask:0xf bank_mask:0xf')
    cut('exp')
    k(f'v_mfma_f32_16x16x16_bf16 {vr(QA,4)}, {vr(SLb,2)}, {vr(vPZ,2)}, 0')
    k(f'v_mov_b32_dpp v{QB+3}, v{QB+1} quad_perm:[2,3,0,1] row_mask:0xf bank_mask:0xf')
    k(f'v_mfma_f32_16x16x16_bf16 {vr(KA,4)}, {vr(X+2,2)}, {vr(vPZ,2)}, 0')
    k(f'v_lshrrev_b32 v{vT1}, 2, v{vKV}')
    k(f'v_add_u32 v{vT1}, s{sW512}, v{vT1}')
    k(f'v_mfma_f32_16x16x16_bf16 {vr(KA+4,4)}, {vr(X+2,2)}, {vr(vZ2,2)}, 0')
    k(f'v_lshrrev_b32 v{X}, 1, v{vL16}')
    k(f'v_mfma_f32_16x16x32_bf16 {vr(QA,4)}, {vr(SLb,4)}, {vr(QB,4)}, {vr(QA,4)}')
    k(f'v_bfi_b32 v{X}, 24, v{vL16}, v{X}')
    k(f'v_mfma_f32_16x16x32_bf16 {vr(KA,4)}, {vr(VT,4)}, {vr(QB,4)}, {vr(KA,4)}')
    k(f'v_add_u32 v{X}, s{sW512}, v{X}')
    k(f'v_mfma_f32_16x16x32_bf16 {vr(KA+4,4)}, {vr(VT+4,4)}, {vr(QB,4)}, {vr(KA+4,4)}')
    zero16(k, VA)
    k(f'v_rcp_f32 v{vM}, v{QA}')
    cut('pv')
    k(f's_mov_b64 exec, s[{sMB0}:{sMB0+1}]')
    for t in range(2):
        A = KA + 4*t
        for i in range(4): k(f'v_mul_f32 v{A+i}, v{A+i}, v{vM}')
        k(f'v_cvt_pk_bf16_f32 v{A}, v{A}, v{A+1}\nv_cvt_pk_bf16_f32 v{A+1}, v{A+2}, v{A+3}')
        k(f'ds_write_b64 v{vOW}, {vr(A,2)} offset:{128*t}')
    k('s_mov_b64 exec, -1')
    zero16(k, QA)
    k.drain()
    k.wait(lg=0)
    k('s_barrier')
    cut('b3')
    k(aread(0, 0)); k(aread(1, 1))
    stage = [f'ds_write_b128 v{X}, {vr(KF,4)} offset:{LDS_SMT}', f'ds_write_b32 v{vT1}, v{X+2} offset:{LDS_SMT+2048}', f'ds_write_b32 v{vT1}, v{X+3} offset:{LDS_SMT+2048+32}']
    k(f's_cmp_eq_u32 s{sSTEP}, 63\ns_cbranch_scc1 {L("R_end")}')
    for o in stage: k.side(o)
    ACC = [QA, VA, VA+4, VT, VT+4]
    PK = [AW+8, QB, QB+1, QB+2, QB+3]
    def post_ops(t):
        A = ACC[t]
        o = [f'v_add_f32 v{A}, v{A}, v{A+2}', f'v_add_f32 v{A+1}, v{A+1}, v{A+3}', f'v_cvt_pk_bf16_f32 v{PK[t]}, v{A}, v{A+1}']
        if t in (0, 1, 3): o.append(f'v_bfi_b32 v{PK[t]}, 1, s{sTAG}, v{PK[t]}')
        return o
    P5 = AW + 8
    fifth = [f'v_permlane32_swap_b32 v{P5}, v{P5+2}', f'v_permlane16_swap_b32 v{P5}, v{P5+1}', f'v_permlane16_swap_b32 v{P5+2}, v{P5+3}', 'STORE0']
    def em(o):
        if o == 'STORE0':
            k('s_mov_b64 exec, 0xffff'); k(f'buffer_store_dwordx4 {vr(P5,4)}, v{vL16}, {WSR}, s{sSL0} offen{S}'); k.vm[-1] = {'st0'}; k('s_mov_b64 exec, -1')
        else: k(o)
    pend = []
    for idx, f in enumerate(OSEQ):
        smf(k, ACC[idx // 2], AW + 4*f[2], f)
        k.gap(1)
        if idx == 4: pend += post_ops(0)
        if idx == 6: pend += [fifth[0]] + post_ops(1)[:2] + fifth[1:] + post_ops(1)[2:]
        if idx == 8: pend += post_ops(2)
        for _ in range(2):
            if pend: em(pend.pop(0))
        cut(f'w{idx}')
    for o in pend + post_ops(3) + post_ops(4): em(o)
    k(f'buffer_store_dwordx4 {vr(QB,4)}, v{vL16}, {WSR}, s{sSL1} offen{S}'); k.vm[-1] = {'st1'}
    k.drain()
    stamp(k, 4)
    cut('wo')
    LAND = [SLa, SLa+4, SLb, SLb+4]
    SEL, RACC = AW, AW+4
    red = role in '01'
    zero16(k, VA)
    zero(k, QA, 4)
    if role == '3': k(f'v_mov_b32 v{vRS}, s{sSTEP}')
    if role == '3' and OPT.get('kvflag'):
        k(f'v_cmp_eq_u32 vcc, 0, v{vAGS}\ns_cbranch_vccnz {L("R_slowk")}')
        k.label(L('R_contk'))
        k(f's_add_u32 s{sT}, s{sSTEP}, 3\ns_lshr_b32 s{sT}, s{sT}, 1\ns_min_u32 s{sT}, s{sT}, 31\ns_lshl_b32 s{sT}, s{sT}, 2\ns_add_u32 s{sKVF}, s{sT}, s{sKVB}')
    if red:
        for r in range(4): k(f'v_cndmask_b32 v{SEL+r}, v{vZ1}, v{vPAT}, s[{sMSEL+2*r}:{sMSEL+2*r+1}]')
    k(f's_add_u32 s{sSTEP}, s{sSTEP}, 1')
    if not OPT.get('samekv'): k(f's_add_u32 s{sKO}, s{sKO}, 0x80000\ns_add_u32 s{sVO}, s{sVO}, 0x80000')
    k(f's_add_u32 s{sAGW}, s{sRING}, s{sAGB}\ns_add_u32 s{sXGW}, s{sRING}, s{sXGB}\ns_add_u32 s{sE1}, s{sAGW}, s{sW1024}\ns_add_u32 s{sE0}, s{sAGW}, s{sW256}')
    k(f's_add_u32 s{sL1}, s{sRING}, s{sXGO}\ns_add_u32 s{sL0}, s{sL1}, s{sW256}\ns_add_u32 s{sL1}, s{sL1}, s{sW1024}')
    k(f's_mov_b32 s{sEXP}, s{sEXN}\ns_add_u32 s{sEXN}, s{sEXN}, s{sXP}')
    k(f'v_and_b32 v{X}, 0xff, v{vL16}')
    k(f'v_bfe_u32 v{vT1}, v{vL16}, 5, 2\nv_lshlrev_b32 v{vM}, 8, v{vT1}\nv_and_b32 v{X+1}, 0x90, v{vL16}\nv_add_u32 v{vM}, v{vM}, v{X+1}')
    k(f'v_and_b32 v{X+1}, 64, v{vL16}\nv_xor_b32 v{X+1}, s{sT+7}, v{X+1}\nv_add_u32 v{vM}, v{vM}, v{X+1}')
    def rs_loads():
        for i in range(4): k(f'buffer_load_dwordx4 {vr(LAND[i],4)}, v{vRS}, {WSR}, s{sRS+i} offen sc1')
    if red:
        if role == '1': k(f's_cmp_ge_u32 s{sJ}, 8\ns_cbranch_scc1 {L("R_nored")}')
        stv = k.state()
        wait_tag(k, 'st1' if role == '0' else 'st0')
        for _ in range(OPT.get('rgap', 0)): k('s_nop 7')
        rs_loads()
        st0 = k.state()
        k(f's_cmp_eq_u32 s{sTAG}, 0\ns_cbranch_scc1 {L("R_rs0")}')
        for tg in (1, 0):
            k.set_state(st0)
            k.label(L(f'R_rs{tg}'))
            op = 'v_or3_b32 {d}, {a}, {b}, {c}' if tg == 0 else 'v_bitop3_b32 {d}, {a}, {b}, {c} bitop3:0x80'
            o3 = lambda a, b, c: k(op.format(d=f'v{vT1}', a=f'v{a}', b=f'v{b}', c=f'v{c}'))
            k(f'v_mfma_f32_16x16x32_bf16 {vr(RACC,4)}, {vr(LAND[0],4)}, {vr(SEL,4)}, 0')
            k(f'v_mfma_f32_16x16x32_bf16 {vr(RACC,4)}, {vr(LAND[1],4)}, {vr(SEL,4)}, {vr(RACC,4)}')
            o3(LAND[0], LAND[0]+2, LAND[1])
            k(f'v_mfma_f32_16x16x32_bf16 {vr(RACC,4)}, {vr(LAND[2],4)}, {vr(SEL,4)}, {vr(RACC,4)}')
            o3(vT1, LAND[1]+2, LAND[2])
            k(f'v_mfma_f32_16x16x32_bf16 {vr(RACC,4)}, {vr(LAND[3],4)}, {vr(SEL,4)}, {vr(RACC,4)}')
            o3(vT1, LAND[2]+2, LAND[3]); o3(vT1, vT1, LAND[3]+2)
            k(f'v_and_b32 v{vT1}, 1, v{vT1}')
            k(f'v_cmp_ne_u32 vcc, {tg}, v{vT1}')
            k(f's_cbranch_vccz {L("R_rsok")}')
            rs_loads()
            k(f's_sub_u32 s{sBUD}, s{sBUD}, 1\ns_cbranch_scc1 {L("R_abort")}')
            k.force_wait(vm=0)
            k(f's_branch {L(f"R_rs{tg}")}')
        k.vm = []; k.hist = []
        k.label(L('R_rsok'))
        k('s_nop 2')
        D = RACC
        k(f'v_permlane32_swap_b32 v{D}, v{D+2}\nv_permlane32_swap_b32 v{D+1}, v{D+3}')
        k(f'v_add_f32 v{D}, v{D}, v{D+2}\nv_add_f32 v{D+1}, v{D+1}, v{D+3}')
        k(f'v_cvt_pk_bf16_f32 v{D}, v{D}, v{D+1}\nv_min_u32 v{D}, -2, v{D}')
        k(f'buffer_store_dword v{D}, v{vAGS}, {WSR}, s{sAGW} offen{S}')
        xs = f'buffer_store_dword v{D}, v{vAGS}, {WSR}, s{sXGW} offen sc1'
        k.vm[-1] = {'agst'}
        if OPT.get('xfirst', 1) or role == '1': k(xs)
        if OPT.get('ackw', 1) == 1 and role == '0': wait_tag(k, 'agst')
        if OPT.get('ackw', 1) == 2 and role == '0': k.wait(vm=0)
        if role == '1': k.label(L('R_nored'))
    stamp(k, 5)
    load_frag(k, FIRST[QK8])
    k.wait(lg=2)
    if OPT.get('t4'):
        k(f's_cmp_lg_u32 s{sSTEP}, 4\ns_cbranch_scc1 {L("R_nt4")}\ns_memtime s[94:95]'); k.force_wait(lg=0); k.label(L('R_nt4'))
    k('s_barrier')
    if OPT.get('st_c'): stamp(k, 2)
    for _ in range(OPT.get('pgap', 0)): k('s_nop 7')
    k(f's_xor_b32 s{sTAG}, s{sTAG}, 1')
    for r in (sRING, sREARM):
        k(f's_add_u32 s{r}, s{r}, 5120\ns_cmp_eq_u32 s{r}, 15360\ns_cselect_b32 s{r}, 0, s{r}')
    gather(SLa, sE1, sE0, X)
    if role == '0' and not OPT.get('xfirst', 1): k(xs)
    if LI == -3: gather(SLb, sL1, sL0, X)
    k.label(L('R_e'))
    for o in chk8(SLa): k(o)
    k(f's_cbranch_vccnz {L("R_slowe")}')
    put(SLa, 0)
    k.lg[-1] |= {'ew'}
    if OPT.get('st_c'): stamp(k, 3)
    if LI == -2: gather(SLb, sL1, sL0, X)
    load_frag(k, FIRST[SLa])
    wait_tag(k, 'ew')
    if STAMP:
        stamp(k, 6)
        k.wait(lg=0)
        k(f's_mov_b32 m0, s{sSTEP}')
        for i in range(7): k(f'v_writelane_b32 v{248+i}, s{72+2*i}, m0')
        k(f'v_writelane_b32 v255, s{sBUD}, m0')
    k('s_barrier')
    k(f's_branch {L("R_top")}')
    end_state = k.state()
    k.label(L('R_slowe')); k.vm = []; k.lg = []
    gather(SLa, sE1, sE0, X)
    k(f's_sub_u32 s{sBUD}, s{sBUD}, 1\ns_cbranch_scc1 {L("R_abort")}')
    k.force_wait(vm=0)
    k(f's_branch {L("R_e")}')
    k.label(L('R_slowl')); k.vm = []; k.lg = []
    gather(SLb, sL1, sL0, X)
    k(f's_sub_u32 s{sBUD}, s{sBUD}, 1\ns_cbranch_scc1 {L("R_abort")}')
    for o in chk8(SLb): k(o)
    k(f's_cbranch_vccnz {L("R_slowl")}')
    k(f's_branch {L("R_contl")}')
    if role == '3' and OPT.get('kvflag'):
        k.label(L('R_slowk')); k.vm = []; k.lg = []
        k(f'v_and_b32 v{vT1}, 16, v{vL16}\nv_lshlrev_b32 v{vT1}, 7, v{vT1}')
        k(f'buffer_load_dword v{vAGS}, v{vT1}, {WSR}, s{sKVF} offen sc1')
        k(f's_sub_u32 s{sBUD}, s{sBUD}, 1\ns_cbranch_scc1 {L("R_abort")}')
        k(f'v_cmp_eq_u32 vcc, 0, v{vAGS}\ns_cbranch_vccnz {L("R_slowk")}\ns_branch {L("R_contk")}')
    if OPT.get('upto'):
        k.label(L('R_solo'))
        k(f'v_and_b32 v{X}, 0xff, v{vL16}\nv_mov_b32 v{vM}, v{vL16}')
        k(f's_add_u32 s{sSTEP}, s{sSTEP}, 1\ns_and_b32 s{sSTEP}, s{sSTEP}, 31\ns_sub_u32 s{sBUD}, s{sBUD}, 300\ns_cbranch_scc1 {L("R_abort")}')
        k.force_wait(lg=0)
        k(f's_barrier\ns_branch {L("R_top")}')
    k.set_state(end_state)
    return stage

def emit_body(k, role, sc, tagL):
    d = K(); body(d, role, sc, tagL); st = d.state()
    d = K(); d.set_state(st); body(d, role, sc, tagL)
    assert d.state() == st, (d.state(), st)
    k.set_state(st); k.hist = []
    n0 = len(k.out)
    stage = body(k, role, sc, tagL)
    if OPT.get('novm'): k.out[n0:] = [l for l in k.out[n0:] if not l.strip().startswith('buffer_')]
    k.label(f'R_end_{tagL}')
    k.vm = []; k.lg = []
    for o in stage: k(o)
    k.force_wait(vm=0, lg=0)
    k('s_barrier')
    k(f'ds_read_b128 {vr(X,4)}, v{vT2} offset:{LDS_SMT}')
    k(f'buffer_store_dwordx4 {vr(X,4)}, v{vT2}, {WSR}, s{sEXN} offen sc1')
    k.force_wait(vm=0)
    k('s_barrier')
    if role == '3':
        k(f'v_mov_b32 v{vT1}, 64')
        k(f's_mov_b64 exec, 1\nbuffer_store_dword v{vT1}, off, {WSR}, s{sPRO} sc1\ns_mov_b64 exec, -1')
    k.label(f'R_abort_{tagL}')
    k.force_wait(vm=0, lg=0)
    k('s_branch R_exit')

def prologue(k):
    k(f's_load_dwordx2 s[8:9], s[0:1], {KA_WS}')
    k(f's_load_dwordx2 s[16:17], s[0:1], {KA_DBG}')
    k(f's_load_dwordx4 s[72:75], s[0:1], {KA_WQ}')
    k(f's_load_dwordx4 s[76:79], s[0:1], {KA_WV}')
    k(f's_load_dwordx2 s[80:81], s[0:1], {KA_MEM0}')
    k('v_lshrrev_b32 v20, 6, v0\nv_and_b32 v21, 63, v0')
    k(f'v_readfirstlane_b32 s{sW}, v20')
    k('s_mov_b32 s10, 0x10000000\ns_mov_b32 s11, 0x20000\ns_mov_b32 s18, 256\ns_mov_b32 s19, 0x20000\ns_mov_b32 s15, 0x20000')
    k('v_and_b32 v22, 15, v21\nv_lshrrev_b32 v23, 4, v21\nv_and_b32 v24, 1, v22\nv_and_b32 v27, 1, v23\nv_lshrrev_b32 v28, 1, v23')
    k(f'v_lshlrev_b32 v{vL16}, 4, v21')
    k('v_lshl_add_u32 v25, v23, 1, v24\nv_lshrrev_b32 v26, 3, v22\nv_lshlrev_b32 v26, 2, v26\nv_xor_b32 v25, v25, v26')
    k(f'v_lshrrev_b32 v26, 1, v22\nv_lshlrev_b32 v26, 7, v26\nv_lshl_add_u32 v{vAF}, v25, 4, v26')
    k(f's_mul_i32 s{sT}, s{sW}, {NLDS*2048}\ns_add_u32 s{sT}, s{sT}, {LDS_W}\nv_add_u32 v{vLW}, s{sT}, v{vL16}')
    k(f's_add_u32 s{sT}, s{sJ}, 32\ns_and_b32 s{sT+2}, s{sJ}, 4\ns_cmp_eq_u32 s{sW}, 0\ns_cselect_b32 s{sT}, s{sJ}, s{sT}\ns_cselect_b32 s{sT+2}, s{sT+2}, 0')
    k(f's_lshl_b32 s{sT+1}, s{sT}, 7\ns_mov_b32 s{sT+3}, {SL2}')
    k(f'v_lshrrev_b32 v25, 3, v21\nv_mul_lo_u32 v25, v25, s{sT+3}\nv_and_b32 v26, 7, v21\nv_lshl_add_u32 v25, v26, 4, v25\nv_add_u32 v{vRS}, s{sT+1}, v25')
    k(f's_cmp_ge_u32 s{sT}, 40\ns_cselect_b32 s{sT+1}, 0x20000000, s{sT+1}')
    k(f'v_xor_b32 v26, s{sT+2}, v26\nv_lshlrev_b32 v26, 4, v26\nv_lshl_add_u32 v26, v27, 3, v26\nv_lshl_add_u32 v26, v28, 2, v26\nv_add_u32 v{vAGS}, s{sT+1}, v26')
    k(f's_and_b32 s{sT+2}, s{sW}, 1\ns_lshl_b32 s{sT+2}, s{sT+2}, 1\nv_add_u32 v25, s{sT+2}, v28\nv_lshl_add_u32 v25, v25, 1, v24')
    k('v_lshrrev_b32 v26, 3, v22\nv_lshlrev_b32 v26, 2, v26\nv_xor_b32 v25, v25, v26\nv_lshlrev_b32 v25, 4, v25\nv_lshl_add_u32 v25, v27, 3, v25')
    k(f'v_lshrrev_b32 v26, 2, v22\nv_lshl_add_u32 v25, v26, 8, v25\ns_lshr_b32 s{sT+2}, s{sW}, 1\ns_lshl_b32 s{sT+2}, s{sT+2}, 10\nv_add_u32 v{vOW}, s{sT+2}, v25')
    k(f'v_lshrrev_b32 v25, 3, v22\nv_and_b32 v26, 7, v22\nv_lshl_add_u32 v25, v25, 4, v26\nv_lshlrev_b32 v25, 4, v25\nv_lshl_add_u32 v{vKV}, v23, 9, v25')
    k(f's_mov_b32 s{sMB0}, 0x33333333\ns_mov_b32 s{sMB0+1}, 0x33333333\ns_mov_b32 s{sMB1}, 0xcccccccc\ns_mov_b32 s{sMB1+1}, 0xcccccccc')
    for r in range(4):
        m = 0x03030303 << (2*r)
        k(f's_mov_b32 s{sMSEL+2*r}, {m:#x}\ns_mov_b32 s{sMSEL+2*r+1}, {m:#x}')
    k(f's_mov_b32 s{sMS0}, 0x00f0000f\ns_mov_b32 s{sMS0+1}, 0xf0000f00')
    k(f'v_mov_b32 v25, 0x4444\nv_mov_b32 v26, 0xeeee\nv_cndmask_b32 v{vIDX}, v25, v26, s[{sMB1}:{sMB1+1}]')
    k(f'v_lshlrev_b32 v25, 4, v24\nv_mov_b32 v26, 0x3f80\nv_lshlrev_b32 v{vPAT}, v25, v26')
    k(f'v_mov_b32 v{vZ1}, 0\nv_mov_b32 v{vZ2}, 0\nv_mov_b32 v{vPZ}, 0\nv_mov_b32 v{vPZ2}, 0')
    k(f's_lshl_b32 s{sW1024}, s{sW}, 10\ns_lshl_b32 s{sW4}, s{sW}, 2\ns_lshl_b32 s{sW512}, s{sW}, 9\ns_lshl_b32 s{sW256}, s{sW}, 8\ns_add_u32 s{sW256}, s{sW256}, 4096')
    k(f's_lshl_b32 s{sT+7}, s{sW}, 5\ns_add_u32 s{sT+7}, s{sT+7}, 4096\ns_mov_b32 s{sONE}, 0x3f803f80\ns_mov_b32 s{sONE+1}, 0x3f803f80')
    k(f'v_add_u32 v{vT2}, s{sW1024}, v{vL16}')
    k(f's_mov_b32 s{sC}, 0x3e0293ee')
    k(f's_mov_b32 s{sSTEP}, 0\ns_mov_b32 s{sTAG}, 1\ns_mov_b32 s{sBUD}, {OPT.get("budget", 300000)}')
    k(f's_lshl_b32 s{sKO}, s{sJ}, 14\ns_lshl_b32 s{sT}, s{sW}, 11\ns_add_u32 s{sKO}, s{sKO}, s{sT}\ns_add_u32 s{sVO}, s{sKO}, 8192')
    k(f's_mul_i32 s{sRS}, s{sG}, {32*SL2}\ns_add_u32 s{sRS}, s{sRS}, {WS_SLAB}\ns_mul_i32 s{sT}, s{sJ}, {SL2}\ns_add_u32 s{sT}, s{sT}, s{sRS}')
    k(f's_add_u32 s{sSL1}, s{sT}, s{sW1024}\ns_add_u32 s{sSL0}, s{sT}, s{sW256}')
    for i in range(1, 4): k(f's_add_u32 s{sRS+i}, s{sRS}, {i*8*SL2}')
    k(f's_lshl_b32 s{sT}, s{sG}, 15\ns_add_u32 s{sAGB}, s{sT}, {WS_AG}\ns_add_u32 s{sXGB}, s{sT}, {WS_XG}\ns_xor_b32 s{sXGO}, s{sXGB}, 0x8000')
    k(f's_mov_b32 s{sRING}, 0\ns_mov_b32 s{sREARM}, 5120')
    k(f's_lshl_b32 s{sEXN}, s{sJ}, 12\ns_add_u32 s{sEXN}, s{sEXN}, {WS_KVM}\ns_lshr_b32 s{sT}, s{sW}, 1\ns_cmp_eq_u32 s{sT}, s{sG}')
    k(f's_cselect_b32 s{sEXN}, s{sEXN}, 0x20000000\ns_cselect_b32 s{sXP}, 0x20000, 0\ns_mov_b32 s{sEXP}, 0x20000000')
    k(f's_lshl_b32 s83, s{sG}, 5\ns_add_u32 s83, s83, s{sJ}\ns_lshl_b32 s{sPRO}, s83, 7\ns_add_u32 s{sPRO}, s{sPRO}, {FL_PR}')
    k(f's_mul_i32 s{sL1}, s83, 5120\ns_add_u32 s{sL1}, s{sL1}, {WS_M0}\ns_mov_b32 s97, s{sL1}\ns_add_u32 s{sL0}, s{sL1}, s{sW256}\ns_add_u32 s{sL1}, s{sL1}, s{sW1024}')
    k.wait(lg=0)
    if not OPT.get('preinit'):
        zero(k, 24, 4)
        k('v_mov_b32 v29, -1')
        k(f'buffer_store_dwordx4 v[24:27], v{vL16}, {WSR}, s{sSL1} offen sc1')
        k(f's_mov_b64 exec, 0xffff\nbuffer_store_dwordx4 v[24:27], v{vL16}, {WSR}, s{sSL0} offen sc1\ns_mov_b64 exec, -1')
        k(f's_cmp_ge_u32 s{sW}, 2\ns_cbranch_scc1 R_noinit')
        k(f'buffer_store_dword v29, v{vAGS}, {WSR}, s{sAGB} offen sc1')
        k(f'buffer_store_dword v29, v{vAGS}, {WSR}, s{sXGB} offen sc1')
        k.label('R_noinit')
    k(f's_cmp_lg_u32 s{sW}, 3\ns_cbranch_scc1 R_notw3\nv_mov_b32 v{vRS}, 0')
    k.label('R_notw3')
    k.force_wait(vm=0)
    k('s_barrier')
    k('s_getreg_b32 s82, hwreg(HW_REG_XCC_ID)\ns_and_b32 s82, s82, 0xf\ns_or_b32 s82, s82, 0x10\nv_mov_b32 v24, s82')
    k(f's_mov_b64 exec, 1\nbuffer_store_byte v24, off, {DBR}, s83 offset:{DBG_ID} sc1\ns_mov_b64 exec, -1')
    k('v_lshrrev_b32 v28, 2, v21\nv_and_b32 v29, 3, v21\nv_lshlrev_b32 v24, 13, v28\nv_lshl_add_u32 v24, v29, 4, v24')
    k('v_mul_u32_u24 v25, 1280, v28\nv_lshl_add_u32 v25, v29, 4, v25')
    k('v_lshrrev_b32 v30, 1, v23\nv_lshlrev_b32 v30, 4, v30\nv_bfe_u32 v31, v21, 3, 1\nv_lshl_add_u32 v30, v31, 3, v30')
    k('v_and_b32 v31, 1, v23\nv_lshl_add_u32 v30, v31, 2, v30\nv_bfe_u32 v31, v21, 2, 1\nv_add_u32 v30, v30, v31\nv_lshlrev_b32 v30, 6, v30')
    STG = NLDS*2048 - 16384
    k(f's_mul_i32 s84, s{sW}, {NLDS*2048}\ns_add_u32 s84, s84, {LDS_W + STG}\nv_add_u32 v30, s84, v30')
    k('v_lshrrev_b32 v31, 1, v29\nv_lshl_add_u32 v26, v31, 5, v30\nv_and_b32 v31, 1, v29\nv_lshl_add_u32 v26, v31, 3, v26')
    k('v_lshl_add_u32 v27, v29, 3, v30')
    blocks = [(m, p) for m in 'qkv' for p in range(10)] + [('o', tp, k2) for k2 in range(2) for tp in (2, 0, 1)]
    k(f's_lshl_b32 s85, s{sJ}, 8\ns_lshl_b32 s86, s{sW}, 6\ns_add_u32 s85, s85, s86')
    k(f's_mul_i32 s{sT}, s{sG}, {320*8192}\ns_sub_u32 s86, s85, s{sT}\ns_add_u32 s85, s85, s{sT}')
    k(f's_mul_i32 s87, s{sJ}, {128*1280}\ns_mul_i32 s{sT}, s{sG}, 640\ns_add_u32 s87, s87, s{sT}')
    k(f's_lshl_b32 s88, s{sW}, 7\ns_add_u32 s88, s88, s87\ns_lshl_b32 s{sT}, s{sW}, 5\ns_add_u32 s87, s87, s{sT}\ns_add_u32 s87, s87, 512')
    cur = [None]
    def issue(b):
        blk = blocks[b]; m = blk[0]
        if cur[0] != m:
            cur[0] = m
            p = {'q': 72, 'k': 74, 'v': 76, 'o': 78}[m]
            k(f's_mov_b32 s12, s{p}\ns_mov_b32 s13, s{p+1}\ns_mov_b32 s14, 5242880')
        for i in range(4):
            if m == 'o':
                tp, k2 = blk[1], blk[2]
                base, off = ('s88', tp*64) if tp < 2 else ('s87', 0)
                k(f's_add_u32 s89, {base}, {off + (64*k2 + 16*i)*1280}')
            else:
                k(f's_add_u32 s89, {"s85" if blk[1] < 5 else "s86"}, {(64*blk[1] + 16*i)*8192}')
            k(f's_add_u32 m0, s84, {(b % 4)*4096 + i*1024}')
            k(f'buffer_load_dwordx4 v{25 if m == "o" else 24}, {TR}, s89 offen lds')
            k.vm[-1] = {f'dma{b}'}
    parked = []
    def consume(b):
        blk = blocks[b]; m = blk[0]
        wait_tag(k, f'dma{b}')
        post = []
        for te in range(2):
            f = (m, blk[1], te) if m != 'o' else ('o', 2*blk[1] + te, blk[2])
            if f not in PLAN: continue
            src, i, r = PLAN[f]
            if src == 'res':
                kind, base = r[0], int(r[2:r.index(':')])
            elif i >= 10:
                kind, base = 'v', 32 + 8*len(parked)
                parked.append((i, base))
            else:
                kind, base = 'v', 8*te + 240
                post.append((i, base))
            for t in range(4):
                off = (b % 4)*4096 + (32*(t//2) + 2*(t % 2))*64 + te*(32 if m == 'o' else 16)
                k(f'ds_read_b64_tr_b16 {kind}[{base+2*t}:{base+2*t+1}], v{27 if m == "o" else 26} offset:{off}')
        k.wait(lg=0)
        for i, base in post:
            k(f'ds_write_b128 v{vLW}, {vr(base,4)} offset:{i*2048}\nds_write_b128 v{vLW}, {vr(base+4,4)} offset:{i*2048+1024}')
    assert blocks[-1] == ('o', 1, 1)
    for b in range(4): issue(b)
    for b in range(len(blocks)):
        consume(b)
        if b + 4 < len(blocks): issue(b + 4)
    assert len(parked) == 8
    for i, base in parked:
        k(f'ds_write_b128 v{vLW}, {vr(base,4)} offset:{i*2048}\nds_write_b128 v{vLW}, {vr(base+4,4)} offset:{i*2048+1024}')
    k('s_mov_b32 s12, s80\ns_mov_b32 s13, s81\ns_mov_b32 s14, 10240')
    k('v_lshrrev_b32 v28, 2, v22\nv_and_b32 v29, 1, v22\nv_lshl_add_u32 v28, v28, 1, v29\nv_mul_u32_u24 v28, 1280, v28')
    k(f'v_lshl_add_u32 v28, v23, 5, v28\nv_bfe_u32 v29, v22, 1, 1\nv_lshl_add_u32 v28, v29, 4, v28')
    k(f'v_add_u32 v29, s{sW1024}, v{vAF}')
    k(f's_mul_i32 s85, s{sG}, 640\ns_sub_u32 s86, 640, s85\ns_lshl_b32 s89, s{sW}, 7\ns_add_u32 s87, s85, s89\ns_add_u32 s88, s86, s89')
    k('v_and_b32 v30, 7, v21\nv_mul_u32_u24 v30, 1280, v30\nv_lshrrev_b32 v31, 3, v21\nv_lshl_add_u32 v30, v31, 4, v30')
    k.wait(lg=0)
    k(f'buffer_load_dwordx4 v[32:35], v28, {TR}, s87 offen')
    k(f'buffer_load_dwordx4 v[36:39], v28, {TR}, s85 offen offset:512')
    k(f'buffer_load_dwordx4 v[40:43], v28, {TR}, s88 offen')
    k(f'buffer_load_dwordx4 v[44:47], v30, {TR}, s86 offen offset:512')
    k(f'ds_write_b128 v29, v[32:35]')
    k(f'ds_write_b128 v{vAF}, v[36:39] offset:4096')
    for c in range(8): k(f'v_min_u32 v{40+c}, -2, v{40+c}')
    k(f's_add_u32 s89, s97, 4096')
    k(f'buffer_store_dwordx4 v[40:43], v29, {WSR}, s97 offen')
    k(f'buffer_store_dwordx4 v[44:47], v{vL16}, {WSR}, s89 offen')
    k.force_wait(vm=0, lg=0)

def enter(k, ready=None):
    k.label('R_hs')
    k(f'buffer_load_ubyte v29, v21, {DBR}, 0 offen offset:{DBG_ID} sc1')
    k(f's_sub_u32 s{sBUD}, s{sBUD}, 1\ns_cbranch_scc1 R_exit')
    k('v_cmp_eq_u32 vcc, 0, v29\ns_cbranch_vccnz R_hs')
    k('v_cmp_ne_u32 vcc, s82, v29')
    k(f's_cmp_eq_u32 s{sG}, 0\ns_cselect_b32 s83, vcc_lo, vcc_hi')
    if OPT.get('kvflag'):
        k(f's_lshr_b32 s{sKVB}, s{sJ}, 1\ns_lshl_b32 s{sKVB}, s{sKVB}, 7\ns_add_u32 s{sKVB}, s{sKVB}, {FL_KV}\ns_add_u32 s{sKVF}, s{sKVB}, 4')
        k(f'v_and_b32 v28, 16, v{vL16}\nv_lshlrev_b32 v28, 7, v28')
        k.label('R_kv0')
        k(f'buffer_load_dword v29, v28, {WSR}, s{sKVB} offen sc1')
        k(f's_sub_u32 s{sBUD}, s{sBUD}, 1\ns_cbranch_scc1 R_exit')
        k('v_cmp_eq_u32 vcc, 0, v29\ns_cbranch_vccnz R_kv0')
    k(f'buffer_load_dwordx4 {vr(KT,4)}, v{vKV}, {WSR}, s{sKO} offen{NT()}')
    k(f'buffer_load_dwordx4 {vr(KT+4,4)}, v{vKV}, {WSR}, s{sKO} offen offset:128{NT()}')
    k(f's_add_u32 s{sKO}, s{sKO}, 0x80000')
    zero(k, QA, 24)
    k(f'v_and_b32 v{X}, 0xff, v{vL16}')
    k(f'v_bfe_u32 v{vT1}, v{vL16}, 5, 2\nv_lshlrev_b32 v{vM}, 8, v{vT1}\nv_and_b32 v{X+1}, 0x90, v{vL16}\nv_add_u32 v{vM}, v{vM}, v{X+1}')
    k(f'v_and_b32 v{X+1}, 64, v{vL16}\nv_xor_b32 v{X+1}, s{sT+7}, v{X+1}\nv_add_u32 v{vM}, v{vM}, v{X+1}')
    k('s_barrier')
    load_frag(k, FIRST[QK8]); load_frag(k, FIRST[SLa])
    if OPT.get('li', -2) <= -2:
        k(f'buffer_load_dwordx4 {vr(SLb,4)}, v{vL16}, {WSR}, s{sL1} offen sc1')
        k(f'buffer_load_dwordx4 {vr(SLb+4,4)}, v{X}, {WSR}, s{sL0} offen sc1')
    k.force_wait(vm=0, lg=0)
    for w in range(3):
        k(f's_cmp_eq_u32 s{sW}, {w}\ns_cbranch_scc1 R_w{w}')
    for w in (3, 2, 1, 0):
        if w < 3: k.label(f'R_w{w}')
        k(f's_cmp_eq_u32 s83, 0\ns_cbranch_scc1 R_top_{w}0\ns_branch R_top_{w}1')
    for sc in (0, 1):
        for role in '0123':
            k.raw('.p2align 6')
            emit_body(k, role, sc, f'{role}{sc}')

def standalone(dbg=False, spread=False, timing=False, stamps=False, opt={}):
    global STAMP, OPT
    STAMP = stamps; OPT = opt
    from asmlib import kernel_desc
    k = K()
    name = 'rec_kernel'
    k.raw('; @launch grid=(256,1,1) block=(256,1,1) lds=163840')
    k.raw('.amdgcn_target "amdgcn-amd-amdhsa--gfx950"\n.text')
    k.raw(f'.globl {name}\n.p2align 8\n.type {name},@function\n{name}:')
    if spread:
        k(f's_cmp_ge_u32 s2, 64\ns_cbranch_scc1 R_done\ns_and_b32 s{sJ}, s2, 31\ns_lshr_b32 s{sG}, s2, 5')
    else:
        k(f's_cmp_ge_u32 s2, 256\ns_cbranch_scc1 R_done\ns_and_b32 s{sG}, s2, 7\ns_cmp_ge_u32 s{sG}, 2\ns_cbranch_scc1 R_done\ns_lshr_b32 s{sJ}, s2, 3')
    if timing:
        k('s_memrealtime s[90:91]'); k.wait(lg=0)
    prologue(k)
    if timing:
        k('s_memrealtime s[92:93]\ns_memtime s[94:95]'); k.wait(lg=0)
    enter(k)
    k.label('R_exit')
    k(f's_lshl_b32 s96, s{sG}, 5\ns_add_u32 s96, s96, s{sJ}\ns_lshl_b32 s96, s96, 2\ns_add_u32 s96, s96, s{sW}')
    if stamps:
        k(f's_lshl_b32 s90, s96, 11\ns_add_u32 s90, s90, {WS_MEMH + 0x120000}')
        k(f'v_lshrrev_b32 v24, 2, v{vL16}')
        for i in range(8): k(f'buffer_store_dword v{248+i}, v24, {WSR}, s90 offen offset:{256*i}')
        k.force_wait(vm=0)
    if timing:
        k('s_memrealtime s[64:65]\ns_memtime s[66:67]'); k.wait(lg=0)
        k(f's_sub_u32 s92, s92, s90\ns_sub_u32 s64, s64, s90\ns_sub_u32 s66, s66, s94')
        k(f'v_mov_b32 v24, s92\nv_mov_b32 v25, s64\nv_mov_b32 v26, s66\nv_mov_b32 v27, s{sBUD}')
        k(f's_lshl_b32 s90, s96, 4\ns_add_u32 s90, s90, {WS_MEMH + 0x100000}')
        k(f'buffer_store_dwordx4 v[24:27], off, {WSR}, s90')
        k.force_wait(vm=0)
    k.label('R_done')
    k('s_endpgm')
    k.raw('.section .rodata,"a"\n.p2align 6')
    k.raw(kernel_desc(name, vgpr=512, accum=256))
    return k.text(), name

if __name__ == '__main__':
    import asmlib
    t, name = standalone(False, False, True)
    open('rec2.s', 'w').write(t)
    asmlib.build(t, name, 'rec2.co')
    import cdna_launch
    print(cdna_launch.address_register_problem('rec2.co', name))
    d = K(); emit_body(d, '0', 0, 'x'); open('body_0.s', 'w').write(d.text()); print(d.stats, d.n)
```

```python
from kfw import K
from layout import *
OPT = {}
def vr(b, n): return f'v[{b}:{b+n-1}]'
WSR = 's[8:11]'
sXW, sIDX, sW = 3, 5, 4
def areg(rt, ks):
    i = (rt*40 + ks)*4
    return f'a[{i}:{i+3}]' if i < 256 else vr(192 + i - 256, 4)
vL16, vTR, vSRC, vS8, vS3, vT = 0, 1, 2, 3, 4, 5
BF = 8
ACC = 32
EP = 96
sU, sPU, sPS, sPO0, sPO1, sRB, sCG, sSLOT, sOUT, sPEND, sROWS, sBUD = 20, 21, 22, 23, 24, 25, 26, 27, 28, 29, 30, 40
SR0, SR1 = 's[12:15]', 's[16:19]'
PT = 72
def NUF(): return OPT.get('nu', 246)

def g1_prefetch_unit(k, L):
    k(f's_mov_b32 s{sPS}, 0')
    k(f's_cmp_ge_u32 s{sPU}, 192\ns_cbranch_scc1 {L}_f')
    k(f's_mov_b32 s12, s{PT}\ns_mov_b32 s13, s{PT+1}\ns_and_b32 s{sPO0}, s{sPU}, 63')
    k(f's_lshl_b32 s{sPO0}, s{sPO0}, 7\ns_lshl_b32 s64, s{sW}, 18\ns_add_u32 s{sPO0}, s{sPO0}, s64\ns_add_u32 s{sPO1}, s{sPO0}, 64')
    k(f's_mov_b32 s16, s12\ns_mov_b32 s17, s13\ns_mov_b32 s14, 5242880\ns_mov_b32 s18, 5242880\ns_mov_b32 s{sROWS}, {16*8192}\nv_mov_b32 v{vSRC}, v{vS8}')
    k(f's_branch {L}_d')
    k.label(f'{L}_f')
    k(f's_sub_u32 s{sPO0}, s{sPU}, 192\ns_lshl_b32 s{sPO0}, s{sPO0}, 6\ns_mul_i32 s64, s{sW}, {32*3456}\ns_add_u32 s{sPO0}, s{sPO0}, s64\ns_mov_b32 s{sPO1}, s{sPO0}')
    k(f's_mov_b32 s12, s{PT+8}\ns_mov_b32 s13, s{PT+9}\ns_mov_b32 s16, s{PT+10}\ns_mov_b32 s17, s{PT+11}')
    k(f's_cmp_lt_u32 s{sPU}, {NUF()}\ns_cselect_b32 s14, 2211840, 0\ns_mov_b32 s18, s14\ns_mov_b32 s{sROWS}, {16*3456}\nv_mov_b32 v{vSRC}, v{vS3}')
    k.label(f'{L}_d')

def g1_dma_ops(k):
    g = []
    for i in range(4):
        ct, hf = i % 2, i // 2
        o = [f's_add_u32 m0, s{sSLOT}, {ct*8192 + hf*1024}']
        if hf: o.append(f's_add_u32 s64, s{sPO0+ct}, s{sROWS}')
        o.append(f'buffer_load_dwordx4 v{vSRC}, {SR1 if ct else SR0}, s{64 if hf else sPO0+ct} offen lds')
        g.append(o)
    return g
def g1_advance(k, L):
    k(f's_lshl_b32 s64, s{sROWS}, 3\ns_add_u32 s{sPO0}, s{sPO0}, s64\ns_add_u32 s{sPO1}, s{sPO1}, s64')
    k(f's_add_u32 s{sSLOT}, s{sSLOT}, 16384\ns_and_b32 s{sSLOT}, s{sSLOT}, 0xffff')
    k(f's_add_u32 s{sPS}, s{sPS}, 1\ns_cmp_lt_u32 s{sPS}, 5\ns_cbranch_scc1 {L}_n')
    k(f's_add_u32 s{sPU}, s{sPU}, 24')
    g1_prefetch_unit(k, L)
    k.label(f'{L}_n')

def bread(buf, ks):
    return [f'ds_read_b64_tr_b16 {vr(BF + 8*buf + 4*ct + 2*t, 2)}, v{vTR} offset:{ct*8192 + (16*ks + 4*t)*64}' for ct in range(2) for t in range(2)]

def g1_unit(k, orient):
    tagL = f'G_{orient}'
    for ks in range(40):
        st, kk = ks // 8, ks % 8
        buf = ks % 2
        last = kk == 7
        nxt = bread(1 - buf, (kk + 1) % 8)
        dma = g1_dma_ops(k) if kk == 0 else None
        for q, (rt, ct) in enumerate(((0, 0), (1, 0), (0, 1), (1, 1))):
            acc = vr(ACC + 16*(2*rt + ct), 16)
            w, x = vr(BF + 8*buf + 4*ct, 4), areg(rt, ks)
            a, b = (x, w) if orient == 'V' else (w, x)
            k(f'v_mfma_f32_32x32x16_bf16 {acc}, {a}, {b}, {0 if ks == 0 else acc}')
            if last and q == 0:
                k.force_wait(vm=8, lg=0)
                k(f'v_add_u32 v{vTR}, 0x4000, v{vTR}')
                k('s_barrier')
                k(f'v_and_b32 v{vTR}, 0xffff, v{vTR}')
                k(nxt[0])
            else: k(nxt[q])
            if dma:
                for o in dma[q]:
                    if not (OPT.get('nodma') and o.startswith('buffer')): k(o)
                k.vm = []
            if kk == 1 and q == 0: g1_advance(k, f'{tagL}_a{st}')

def g1_store(k):
    for rt in range(2):
        if rt: k(f's_add_u32 s{sOUT}, s{sOUT}, s65')
        for ct in range(2):
            A = ACC + 16*(2*rt + ct); D = EP + 8*(2*rt + ct)
            for j in range(8): k(f'v_cvt_pk_bf16_f32 v{D+j}, v{A+2*j}, v{A+2*j+1}')
            for cc in range(2):
                k(f'buffer_store_dwordx4 {vr(D+4*cc,4)}, v{vL16}, {WSR}, s{sOUT} offen offset:{2048*ct + 1024*cc}{OPT.get("stb", " sc1")}')
    k.vm = []

def g1_ffn(k):
    k('s_mov_b32 s66, 0xc0135761\ns_mov_b32 s67, 0xbdd2d3e8')
    for rt in range(2):
        G = ACC + 32*rt; U = G + 16; T = EP + 16; D = EP + 8*rt
        k(f'v_mov_b32 v{vT}, s66')
        for h in range(2):
            R = range(8*h, 8*h + 8)
            for j in R: k(f'v_mul_f32 v{T+j%8}, v{G+j}, v{G+j}')
            for j in R: k(f'v_fma_f32 v{T+j%8}, v{T+j%8}, s67, v{vT}')
            for j in R: k(f'v_mul_f32 v{T+j%8}, v{T+j%8}, v{G+j}')
            for j in R: k(f'v_exp_f32 v{T+j%8}, v{T+j%8}')
            for j in R: k(f'v_mul_f32 v{G+j}, v{G+j}, v{U+j}')
            for j in R: k(f'v_add_f32 v{T+j%8}, 1.0, v{T+j%8}')
            for j in R: k(f'v_rcp_f32 v{T+j%8}, v{T+j%8}')
            for j in R: k(f'v_mul_f32 v{G+j}, v{G+j}, v{T+j%8}')
            for j in range(4): k(f'v_cvt_pk_bf16_f32 v{D+4*h+j}, v{G+8*h+2*j}, v{G+8*h+2*j+1}')
            k(f'buffer_store_dwordx4 {vr(D+4*h,4)}, v{vL16}, {WSR}, s{sOUT} offen offset:{1024*h} sc1')
        if rt == 0: k(f's_add_u32 s{sOUT}, s{sOUT}, {108*1024}')
    k.vm = []

def common(k):
    k(f's_load_dwordx2 s[8:9], s[0:1], {KA_WS}')
    k(f's_load_dwordx8 s[{PT}:{PT+7}], s[0:1], {KA_WQ}')
    k(f's_load_dwordx4 s[{PT+8}:{PT+11}], s[0:1], {KA_WG}')
    k(f's_load_dwordx2 s[{PT+12}:{PT+13}], s[0:1], {KA_WD}')
    k(f's_load_dwordx2 s[{PT+14}:{PT+15}], s[0:1], {KA_X}')
    k(f's_load_dwordx2 s[{PT+16}:{PT+17}], s[0:1], {KA_OUT}')
    k(f'v_lshrrev_b32 v6, 6, v0\nv_and_b32 v7, 63, v0\nv_readfirstlane_b32 s{sW}, v6')
    k('s_mov_b32 s10, 0x10000000\ns_mov_b32 s11, 0x20000\ns_mov_b32 s15, 0x20000\ns_mov_b32 s19, 0x20000')
    k(f'v_lshlrev_b32 v{vL16}, 4, v7\ns_mov_b32 s{sBUD}, 2000000')
    k.wait(lg=0)

def g1(k):
    k(f's_and_b32 s{sRB}, s{sIDX}, 7\ns_lshr_b32 s{sCG}, s{sIDX}, 3\ns_lshl_b32 s64, s{sXW}, 2\ns_add_u32 s{sCG}, s{sCG}, s64')
    k(f'v_lshrrev_b32 v8, 2, v7\nv_and_b32 v9, 3, v7\nv_lshlrev_b32 v{vS8}, 13, v8\nv_lshl_add_u32 v{vS8}, v9, 4, v{vS8}')
    k(f'v_mul_u32_u24 v{vS3}, 3456, v8\nv_lshl_add_u32 v{vS3}, v9, 4, v{vS3}')
    k(f'v_lshrrev_b32 v8, 5, v7\nv_lshlrev_b32 v8, 9, v8\nv_bfe_u32 v10, v7, 2, 2\nv_lshl_add_u32 v8, v10, 6, v8\nv_bfe_u32 v10, v7, 4, 1\nv_lshl_add_u32 v8, v10, 5, v8\nv_lshl_add_u32 v{vTR}, v9, 3, v8')
    k(f's_add_u32 s{sU}, s{sCG}, 128\ns_mov_b32 s{sPU}, s{sU}\ns_lshl_b32 s{sSLOT}, s{sW}, 11\ns_mov_b32 s{sPEND}, 0')
    g1_prefetch_unit(k, 'G_p0')
    for n in range(3):
        for g in g1_dma_ops(k):
            for o in g: k(o)
        g1_advance(k, f'G_p{n+1}')
    k(f's_lshl_b32 s64, s{sRB}, 3\ns_lshl_b32 s65, s{sW}, 1\ns_add_u32 s{31}, s64, s65\ns_mul_i32 s64, s31, 40960\ns_add_u32 s64, s64, {WS_XN}')
    for i in range(80):
        if i and i % 4 == 0: k('s_add_u32 s64, s64, 4096')
        if i == 48: k.force_wait(vm=32)
        k(f'buffer_load_dwordx4 {areg(i//40, i%40)}, v{vL16}, {WSR}, s64 offen offset:{1024*(i%4)}')
    k.force_wait(vm=0)
    k('s_barrier')
    if OPT.get('t1'): k('s_memrealtime s[92:93]'); k.wait(lg=0)
    for o in bread(0, 0): k(o)
    st0 = k.state()
    k.label('G_loop')
    g1_unit(k, 'T')
    assert k.state()[1] == st0[1]
    k(f's_cmp_ge_u32 s{sU}, 192\ns_cbranch_scc1 G_isf')
    k(f's_lshl_b32 s64, s{sU}, 12\ns_add_u32 s64, s64, {WS_Q - 128*4096}\ns_mov_b32 s65, 0x40000')
    k(f's_lshl_b32 s{sOUT}, s31, 18\ns_add_u32 s{sOUT}, s{sOUT}, s64')
    k.flush_hazards()
    if not OPT.get('nost'): g1_store(k)
    k('s_branch G_next')
    k.label('G_isf')
    k(f's_mul_i32 s{sOUT}, s31, {108*1024}\ns_lshl_b32 s64, s{sU}, 11\ns_add_u32 s{sOUT}, s{sOUT}, s64\ns_add_u32 s{sOUT}, s{sOUT}, {WS_H - 192*2048}')
    k('s_nop 7')
    g1_ffn(k)
    k.label('G_next')
    k(f's_add_u32 s{sU}, s{sU}, 24\ns_cmp_lt_u32 s{sU}, {NUF()}\ns_cbranch_scc1 G_loop')
    k.force_wait(vm=0, lg=0)
    k('s_barrier')
    k(f's_mul_i32 s64, s{sRB}, 24\ns_add_u32 s64, s64, s{sCG}\ns_lshl_b32 s64, s64, 2\ns_add_u32 s64, s64, {FL_G1}')
    k(f's_cmp_lg_u32 s{sW}, 0\ns_cbranch_scc1 G_end')
    k(f'v_mov_b32 v{vT}, 1\ns_mov_b64 exec, 1\nbuffer_store_dword v{vT}, off, {WSR}, s64 sc1\ns_mov_b64 exec, -1')
    k.label('G_end'); k.vm = []

sP, sPP = 20, 21
def kv_dma(k):
    return [f's_mov_b32 m0, s{sSLOT}'] + [f'buffer_load_dwordx4 v{vL16}, {SR1}, s{sPO0} offen offset:{1024*i} lds' for i in range(4)]
def kv_advance(k, L):
    k(f's_add_u32 s{sPO0}, s{sPO0}, 8192\ns_add_u32 s{sSLOT}, s{sSLOT}, 16384\ns_and_b32 s{sSLOT}, s{sSLOT}, 0xffff')
    k(f's_add_u32 s{sPS}, s{sPS}, 1\ns_cmp_lt_u32 s{sPS}, 5\ns_cbranch_scc1 {L}')
    k(f's_mov_b32 s{sPS}, 0\ns_add_u32 s{sPO0}, s{sPO0}, {11*40960}')
    k.label(L)
def xread(buf, kk): return [f'ds_read_b128 {vr(BF + 8*buf + 4*rt, 4)}, v{vTR} offset:{rt*8192 + kk*1024}' for rt in range(2)]
def kv_unit(k, orient):
    tagL = f'KV_{orient}'
    for ks in range(40):
        st, kk = ks // 8, ks % 8
        buf = ks % 2
        nxt = xread(1 - buf, (kk + 1) % 8)
        dma = kv_dma(k) if kk == 0 else None
        for q, (rt, ct) in enumerate(((0, 0), (0, 1), (1, 0), (1, 1))):
            acc = vr(ACC + 16*(2*rt + ct), 16)
            x, w = vr(BF + 8*buf + 4*rt, 4), areg(ct, ks)
            a, b = (x, w) if orient == 'V' else (w, x)
            k(f'v_mfma_f32_32x32x16_bf16 {acc}, {a}, {b}, {0 if ks == 0 else acc}')
            if kk == 7 and q == 0:
                k.force_wait(vm=8, lg=0)
                k(f'v_add_u32 v{vTR}, 0x4000, v{vTR}')
                k('s_barrier')
                k(f'v_and_b32 v{vTR}, 0xffff, v{vTR}')
            if q < 2: k(nxt[q])
            if dma:
                if q == 0: k(dma[0])
                k(dma[q + 1]); k.vm = []
            if kk == 1 and q == 0: kv_advance(k, f'{tagL}_a{st}')
            if ks == 17 and q == 0:
                k(f's_cmp_eq_u32 s{sPEND}, 0\ns_cbranch_scc1 {tagL}_np')
                k(f'v_mov_b32 v{vT}, 1\ns_mov_b64 exec, 1\nbuffer_store_dword v{vT}, off, {WSR}, s{sPEND} sc1\ns_mov_b64 exec, -1')
                k.label(f'{tagL}_np'); k.vm = []

def kv(k):
    k(f's_lshl_b32 s64, s{sXW}, 5\ns_add_u32 s64, s64, s{sIDX}\ns_mul_i32 s{sCG}, s64, 10923\ns_lshr_b32 s{sCG}, s{sCG}, 16\ns_mul_i32 s65, s{sCG}, 6\ns_sub_u32 s{sP}, s64, s65')
    k(f's_add_u32 s16, s8, {WS_XN}\ns_addc_u32 s17, s9, 0\ns_mov_b32 s18, 2621440')
    k(f's_lshl_b32 s64, s{sP}, 1\ns_lshr_b32 s65, s{sW}, 1\ns_add_u32 s64, s64, s65\ns_mul_i32 s{sPO0}, s64, 40960\ns_and_b32 s65, s{sW}, 1\ns_lshl_b32 s65, s65, 12\ns_add_u32 s{sPO0}, s{sPO0}, s65')
    k(f's_lshl_b32 s{sSLOT}, s{sW}, 12\ns_mov_b32 s{sPS}, 0\ns_mov_b32 s{sPEND}, 0')
    k(f's_cmp_ge_u32 s{sCG}, 16\ns_cselect_b32 s12, s{PT+4}, s{PT+2}\ns_cselect_b32 s13, s{PT+5}, s{PT+3}\ns_mov_b32 s14, 5242880')
    k(f's_and_b32 s64, s{sCG}, 15\ns_lshl_b32 s64, s64, 9\ns_lshl_b32 s65, s{sW}, 7\ns_add_u32 s32, s64, s65\ns_mul_i32 s33, s{sW}, 24576\ns_add_u32 s33, s33, 65536')
    k(f'v_lshrrev_b32 v8, 3, v7\nv_and_b32 v9, 7, v7\nv_lshlrev_b32 v{vS8}, 13, v8\nv_lshl_add_u32 v{vS8}, v9, 4, v{vS8}')
    k(f'v_lshrrev_b32 v8, 5, v7\nv_lshlrev_b32 v8, 10, v8\nv_bfe_u32 v10, v7, 2, 2\nv_lshl_add_u32 v8, v10, 7, v8\nv_bfe_u32 v10, v7, 4, 1\nv_lshl_add_u32 v8, v10, 5, v8')
    k(f'v_and_b32 v9, 3, v7\nv_lshl_add_u32 v8, v9, 3, v8\nv_add_u32 v{vS3}, s33, v8')
    def issue(b):
        for i in range(8):
            k(f's_add_u32 m0, s33, {(b % 3)*8192 + i*1024}\ns_add_u32 s64, s32, {(64*b + 8*i)*8192}')
            k(f'buffer_load_dwordx4 v{vS8}, {SR0}, s64 offen lds'); k.vm[-1] = {f'w{b}'}
    for b in range(3): issue(b)
    for n in range(3):
        for o in kv_dma(k): k(o)
        kv_advance(k, f'KV_p{n}')
    for b in range(10):
        k.wait(vm=k._need(k.vm, {f'w{b}'}))
        for kq in range(4):
            for ct in range(2):
                r = areg(ct, 4*b + kq); kind, base = r[0], int(r[2:r.index(':')])
                for t in range(2):
                    k(f'ds_read_b64_tr_b16 {kind}[{base+2*t}:{base+2*t+1}], v{vS3} offset:{(b % 3)*8192 + (16*kq + 4*t)*128 + 64*ct}')
            if kq == 1: k.wait(lg=0)
        k.wait(lg=0)
        if b + 3 < 10: issue(b + 3)
    k(f'v_mov_b32 v{vTR}, v{vL16}')
    k(f's_and_b32 s64, s{sCG}, 15\ns_lshl_b32 s64, s64, 15\ns_lshr_b32 s65, s{sW}, 1\ns_lshl_b32 s65, s65, 14\ns_add_u32 s64, s64, s65\ns_and_b32 s65, s{sW}, 1\ns_lshl_b32 s65, s65, 12\ns_add_u32 s64, s64, s65')
    k(f's_lshr_b32 s65, s{sCG}, 4\ns_lshl_b32 s65, s65, 13\ns_add_u32 s34, s64, s65\ns_lshl_b32 s35, s{sCG}, 7\ns_add_u32 s35, s35, {FL_KV}')
    k.force_wait(vm=0)
    k('s_barrier')
    if OPT.get('t1'): k('s_memrealtime s[92:93]'); k.wait(lg=0)
    for o in xread(0, 0): k(o)
    st0 = k.state()
    k(f's_cmp_ge_u32 s{sCG}, 16\ns_cbranch_scc1 KV_loopV')
    for orient in 'TV':
        k.set_state(st0); k.hist = []
        k.label(f'KV_loop{orient}')
        kv_unit(k, orient)
        assert k.state()[1] == st0[1]
        k(f's_lshl_b32 s{sOUT}, s{sP}, 20\ns_add_u32 s{sOUT}, s{sOUT}, s34\ns_mov_b32 s65, 0x80000')
        k(f's_lshl_b32 s{sPEND}, s{sP}, 2\ns_add_u32 s{sPEND}, s{sPEND}, s35\ns_cmp_eq_u32 s{sW}, 0\ns_cselect_b32 s{sPEND}, s{sPEND}, 0')
        k.flush_hazards()
        g1_store(k)
        k(f's_add_u32 s{sP}, s{sP}, 6\ns_cmp_lt_u32 s{sP}, 32\ns_cbranch_scc1 KV_loop{orient}')
        if orient == 'T': k('s_branch KV_fin')
    k.label('KV_fin')
    k.force_wait(vm=0, lg=0)
    k('s_barrier')
    k(f's_cmp_eq_u32 s{sPEND}, 0\ns_cbranch_scc1 KV_end')
    k(f'v_mov_b32 v{vT}, 1\ns_mov_b64 exec, 1\nbuffer_store_dword v{vT}, off, {WSR}, s{sPEND} sc1\ns_mov_b64 exec, -1')
    k.label('KV_end'); k.vm = []

def poll(k, L, vaddr, soff, cond, abort, nreg=1, tmp=vT):
    k.label(L)
    for i in range(nreg): k(f'buffer_load_dword v{tmp+i}, v{vaddr}, {WSR}, {soff} offen offset:{256*i} sc1')
    k(f's_sub_u32 s{sBUD}, s{sBUD}, 1\ns_cbranch_scc1 {abort}')
    for i in range(1, nreg): k(f'v_min_u32 v{tmp}, v{tmp}, v{tmp+i}')
    k(f'{cond}, v{tmp}')
    k(f's_cbranch_vccz {L}_ok\ns_sleep 2\ns_branch {L}')
    k.label(f'{L}_ok')

def wait_g1(k, L, abort):
    k(f'v_lshlrev_b32 v6, 2, v7\ns_mov_b32 s64, {FL_G1}')
    poll(k, L, 6, 's64', 'v_cmp_eq_u32 vcc, 0', abort, nreg=3, tmp=8)

def attn(k, abort):
    Q, KK, V, KM, VM, S, SM, P, PM = 8, 40, 72, 104, 136, 152, 168, 184, 192
    O = 8
    vKM, vVM, vPR, vM, vT1, vT2 = 1, 2, 3, 4, 5, 6
    sS, sH, sA, sC, sQ, sK, sX, sMK = 20, 21, 22, 23, 24, 25, 26, 70
    wait_g1(k, 'A_g1', abort)
    k(f's_sub_u32 s{sA}, s{sIDX}, 20\ns_lshl_b32 s{sH}, s{sA}, 2\ns_add_u32 s{sH}, s{sH}, s{sW}\ns_mov_b32 s{sS}, s{sXW}\ns_mov_b32 s{sC}, 0x3e0293ee')
    k(f'v_lshrrev_b32 v8, 5, v7\nv_and_b32 v9, 7, v7\nv_lshlrev_b32 v9, 4, v9\nv_lshl_add_u32 v{vKM}, v8, 7, v9')
    k(f'v_and_b32 v9, 31, v7\nv_lshlrev_b32 v10, 2, v9\nv_lshl_add_u32 v{vVM}, v8, 8, v10')
    k(f'v_lshlrev_b32 v10, 2, v8\nv_sub_u32 v10, v9, v10')
    for r in range(16): k(f'v_cmp_le_i32 s[{sMK+2*r}:{sMK+2*r+1}], {8*(r//4) + r % 4}, v10')
    k(f'v_and_b32 v9, 1, v7\nv_lshlrev_b32 v9, 12, v9\ns_lshl_b32 s64, s{sH}, 7\nv_add_u32 v{vPR}, s64, v9')
    for w in range(4): k(f'v_mov_b64 {vr(VM+4*w+2,2)}, 0')
    k(f'v_mov_b64 {vr(PM+2,2)}, 0')
    k.label('A_loop')
    k(f's_lshl_b32 s64, s{sS}, 5\ns_add_u32 s64, s64, s{sH}\ns_lshl_b32 s{sK}, s64, 14\ns_lshl_b32 s{sQ}, s64, 13\ns_lshl_b32 s{sX}, s64, 12\ns_add_u32 s{sX}, s{sX}, {WS_KVM}')
    k(f's_add_u32 s65, s{sQ}, {WS_Q}\ns_add_u32 s66, s65, 4096\ns_add_u32 s67, s{sK}, 4096\ns_add_u32 s68, s{sK}, 8192\ns_add_u32 s69, s{sK}, 12288')
    for i in range(8):
        k(f'buffer_load_dwordx4 {vr(Q+4*i,4)}, v{vL16}, {WSR}, s{65 + i//4} offen offset:{1024*(i%4)} sc1')
        k(f'buffer_load_dwordx4 {vr(KK+4*i,4)}, v{vL16}, {WSR}, s{sK if i < 4 else 67} offen offset:{1024*(i%4)} sc1')
    for i in range(8): k(f'buffer_load_dwordx4 {vr(V+4*i,4)}, v{vL16}, {WSR}, s{68 + i//4} offen offset:{1024*(i%4)} sc1')
    for i in range(8): k(f'v_mfma_f32_32x32x16_bf16 {vr(S,16)}, {vr(KK+4*i,4)}, {vr(Q+4*i,4)}, {0 if i == 0 else vr(S,16)}')
    k(f'v_mov_b32 v{vT2}, 0xff800000')
    for r in range(16): k(f'v_cndmask_b32 v{S+r}, v{vT2}, v{S+r}, s[{sMK+2*r}:{sMK+2*r+1}]')
    k(f'v_max3_f32 v{vM}, v{S}, v{S+1}, v{S+2}')
    for r in range(3, 15, 2): k(f'v_max3_f32 v{vM}, v{vM}, v{S+r}, v{S+r+1}')
    k(f'v_max_f32 v{vM}, v{vM}, v{S+15}')
    k(f's_mov_b32 s64, {FL_PR}')
    k.wait(vm=0)
    poll(k, 'A_pr', vPR, 's64', f'v_cmp_ge_u32 vcc, s{sS}', abort, tmp=vT1)
    for i in range(8): k(f'buffer_load_dwordx4 {vr(KM+4*i,4)}, v{vKM}, {WSR}, s{sX} offen offset:{256*i} sc1')
    for w in range(4):
        for g in range(2): k(f'buffer_load_dword v{VM+4*w+g}, v{vVM}, {WSR}, s{sX} offen offset:{2048 + 512*w + 128*g} sc1')
    for i in range(8): k(f'v_mfma_f32_32x32x16_bf16 {vr(SM,16)}, {vr(KM+4*i,4)}, {vr(Q+4*i,4)}, {0 if i == 0 else vr(SM,16)}')
    k(f'v_max3_f32 v{vM}, v{vM}, v{SM}, v{SM+1}\nv_max3_f32 v{vM}, v{vM}, v{SM+2}, v{SM+3}')
    k(f'v_mov_b32 v{vT1}, v{vM}\nv_permlane32_swap_b32 v{vM}, v{vT1}\nv_max_f32 v{vM}, v{vM}, v{vT1}\nv_mul_f32 v{vM}, s{sC}, v{vM}')
    E = [SM+i for i in range(4)] + [S+i for i in range(16)]
    for r in E: k(f'v_fma_f32 v{r}, s{sC}, v{r}, -v{vM}')
    for r in E: k(f'v_exp_f32 v{r}, v{r}')
    for j in range(2): k(f'v_cvt_pk_bf16_f32 v{PM+j}, v{SM+2*j}, v{SM+2*j+1}')
    for j in range(8): k(f'v_cvt_pk_bf16_f32 v{P+j}, v{S+2*j}, v{S+2*j+1}')
    adds = [f'v_add_f32 v{vM}, v{E[0]}, v{E[1]}'] + [f'v_add_f32 v{vM}, v{vM}, v{r}' for r in E[2:]]
    adds += [f'v_mov_b32 v{vT1}, v{vM}', 's_nop 1', f'v_permlane32_swap_b32 v{vM}, v{vT1}', f'v_add_f32 v{vM}, v{vM}, v{vT1}', f'v_rcp_f32 v{vM}, v{vM}']
    for w in range(4):
        for (a, b, first) in ((VM+4*w, PM, True), (V+8*w, P, False), (V+8*w+4, P+4, False)):
            k(f'v_mfma_f32_32x32x16_bf16 {vr(O+16*w,16)}, {vr(a,4)}, {vr(b,4)}, {0 if first else vr(O+16*w,16)}')
            for _ in range(5):
                if adds: k(adds.pop(0))
    k(f's_add_u32 s65, s{sQ}, {WS_O}\ns_add_u32 s66, s65, 4096')
    for w in range(4):
        A = O + 16*w
        for r in range(16): k(f'v_mul_f32 v{A+r}, v{A+r}, v{vM}')
        for j in range(8): k(f'v_cvt_pk_bf16_f32 v{A+j}, v{A+2*j}, v{A+2*j+1}')
        for cc in range(2): k(f'buffer_store_dwordx4 {vr(A+4*cc,4)}, v{vL16}, {WSR}, s{65 + w//2} offen offset:{2048*(w%2) + 1024*cc} sc1')
    k(f's_lshl_b32 s64, s{sS}, 3\ns_add_u32 s64, s64, s{sA}\ns_lshl_b32 s64, s64, 7\ns_add_u32 s64, s64, {FL_O}\nv_mov_b32 v{vT1}, 1')
    k.force_wait(vm=0)
    k('s_barrier')
    k(f's_cmp_lg_u32 s{sW}, 0\ns_cbranch_scc1 A_nf')
    k(f's_mov_b64 exec, 1\nbuffer_store_dword v{vT1}, off, {WSR}, s64 sc1\ns_mov_b64 exec, -1')
    k.label('A_nf'); k.vm = [set()]
    k(f's_add_u32 s{sS}, s{sS}, 6\ns_cmp_lt_u32 s{sS}, 64\ns_cbranch_scc1 A_loop')

def wout(k, abort):
    WF, AG, AO, LD, XR, GV, TT = 8, 32, 48, 64, 20, 22, 192
    vSR, vTW, vX, vFO, vRW, vRR = 1, 2, 3, 4, 5, 6
    sS, sCT = 20, 21
    RED_G, RED_O = 110592, 126976
    XR_, OR_ = 's[16:19]', 's[24:27]'
    k(f'v_lshrrev_b32 v8, 2, v7\nv_and_b32 v9, 3, v7\nv_mul_u32_u24 v{vSR}, 1280, v8\nv_lshl_add_u32 v{vSR}, v9, 4, v{vSR}')
    k(f'v_lshrrev_b32 v8, 5, v7\nv_lshlrev_b32 v10, 8, v8\nv_bfe_u32 v11, v7, 2, 2\nv_lshl_add_u32 v10, v11, 6, v10\nv_bfe_u32 v11, v7, 4, 1\nv_lshl_add_u32 v10, v11, 5, v10\nv_lshl_add_u32 v10, v9, 3, v10')
    k(f's_lshl_b32 s33, s{sW}, 15\nv_add_u32 v{vTW}, s33, v10')
    k(f's_mov_b32 s12, s{PT+6}\ns_mov_b32 s13, s{PT+7}\ns_mov_b32 s14, 5242880\ns_lshl_b32 s{sCT}, s{sIDX}, 6\ns_mul_i32 s32, s{sW}, {1024*1280}\ns_add_u32 s32, s32, s{sCT}')
    def issue(b):
        for i in range(8):
            k(f's_add_u32 m0, s33, {(b % 4)*8192 + i*1024}\ns_add_u32 s64, s32, {(128*b + 16*i)*1280}')
            k(f'buffer_load_dwordx4 v{vSR}, {SR0}, s64 offen lds'); k.vm[-1] = {f'w{b}'}
    for b in range(4): issue(b)
    for b in range(8):
        k.wait(vm=k._need(k.vm, {f'w{b}'}))
        for kk in range(8):
            for t in range(2):
                r = 4*(8*b + kk) + 2*t
                k(f'ds_read_b64_tr_b16 a[{r}:{r+1}], v{vTW} offset:{(b % 4)*8192 + (16*kk + 8*t)*64}')
            if kk == 3: k.wait(lg=0)
        k.wait(lg=0)
        if b + 4 < 8: issue(b + 4)
    k('s_barrier')
    k(f's_mov_b32 s12, s{PT+12}\ns_mov_b32 s13, s{PT+13}\ns_mov_b32 s14, 2211840\ns_mul_i32 s33, s{sW}, 27648\ns_mul_i32 s32, s{sW}, {432*1280}\ns_add_u32 s32, s32, s{sCT}')
    for i in range(27):
        k(f's_add_u32 m0, s33, {i*1024}\ns_add_u32 s64, s32, {16*i*1280}')
        k(f'buffer_load_dwordx4 v{vSR}, {SR0}, s64 offen lds')
    k(f'v_add_u32 v{vTW}, s33, v10')
    k(f's_mov_b32 s16, s{PT+14}\ns_mov_b32 s17, s{PT+15}\ns_mov_b32 s18, 2621440\ns_mov_b32 s24, s{PT+16}\ns_mov_b32 s25, s{PT+17}\ns_mov_b32 s26, 2621440\ns_mov_b32 s27, 0x20000')
    k(f'v_and_b32 v9, 31, v7\nv_mul_u32_u24 v9, 1280, v9\nv_lshl_add_u32 v9, v8, 3, v9\ns_lshl_b32 s64, s{sW}, 4\ns_add_u32 s64, s64, s{sCT}\nv_add_u32 v{vX}, s64, v9')
    k(f'v_and_b32 v9, 7, v7\nv_lshlrev_b32 v{vFO}, 7, v9')
    k.force_wait(vm=0)
    wait_g1(k, 'W_g1', abort)
    k(f's_lshl_b32 s64, s{sW}, 12\nv_add_u32 v{vRW}, s64, v{vL16}\ns_lshl_b32 s64, s{sW}, 10\nv_add_u32 v{vRR}, s64, v{vL16}')
    k(f'v_add_u32 v{vRW}, {RED_G}, v{vRW}\nv_add_u32 v{vRR}, {RED_G}, v{vRR}')
    k(f's_mov_b32 s{sS}, s{sXW}\ns_mov_b32 s22, 0xbfb8aa3b')
    def reduce(acc, off, D):
        for b in range(4): k(f'ds_write_b128 v{vRW}, {vr(acc+4*b,4)} offset:{off + 1024*b}')
        k.wait(lg=0)
        k('s_barrier')
        for w in range(4): k(f'ds_read_b128 {vr(TT+4*w,4)}, v{vRR} offset:{off + 4096*w}')
        for i in range(4): k(f'v_add_f32 v{TT+i}, v{TT+i}, v{TT+4+i}')
        for i in range(4): k(f'v_add_f32 v{TT+8+i}, v{TT+8+i}, v{TT+12+i}')
        for i in range(4): k(f'v_add_f32 v{D+i}, v{TT+i}, v{TT+8+i}')
    def rnd(D):
        k(f'v_cvt_pk_bf16_f32 v{TT}, v{D}, v{D+1}\nv_cvt_pk_bf16_f32 v{TT+1}, v{D+2}, v{D+3}')
        for i in range(2): k(f'v_lshlrev_b32 v{D+2*i}, 16, v{TT+i}\nv_and_b32 v{D+2*i+1}, 0xffff0000, v{TT+i}')
    k.label('W_loop')
    k(f's_mul_i32 s64, s{sS}, 110592\ns_add_u32 s64, s64, s33\ns_add_u32 s64, s64, {WS_H}\ns_mul_i32 s23, s{sS}, 40960')
    for i in range(27):
        if i and i % 4 == 0: k('s_add_u32 s64, s64, 4096')
        k(f'buffer_load_dwordx4 {vr(LD+4*i,4)}, v{vL16}, {WSR}, s64 offen offset:{1024*(i%4)} sc1')
    k(f'buffer_load_dwordx2 {vr(XR,2)}, v{vX}, {XR_}, s23 offen')
    wrd = lambda i: [f'ds_read_b64_tr_b16 {vr(WF + 4*(i%3) + 2*t, 2)}, v{vTW} offset:{(16*i + 8*t)*64}' for t in range(2)]
    for i in range(2):
        for o in wrd(i): k(o)
    for i in range(27):
        if i + 2 < 27:
            for o in wrd(i + 2): k(o)
        k(f'v_mfma_f32_32x32x16_bf16 {vr(AG,16)}, {vr(WF+4*(i%3),4)}, {vr(LD+4*i,4)}, {0 if i == 0 else vr(AG,16)}')
    reduce(AG, 0, GV)
    rnd(GV)
    for i in range(4): k(f'v_mul_f32 v{TT+4+i}, s22, v{GV+i}')
    for i in range(4): k(f'v_exp_f32 v{TT+4+i}, v{TT+4+i}')
    for i in range(4): k(f'v_add_f32 v{TT+4+i}, 1.0, v{TT+4+i}')
    for i in range(4): k(f'v_rcp_f32 v{TT+4+i}, v{TT+4+i}')
    for i in range(4): k(f'v_mul_f32 v{GV+i}, v{GV+i}, v{TT+4+i}')
    rnd(GV)
    k(f's_lshl_b32 s64, s{sS}, 10\ns_add_u32 s64, s64, {FL_O}')
    k.wait(vm=0)
    poll(k, 'W_o', vFO, 's64', 'v_cmp_eq_u32 vcc, 0', abort, tmp=TT)
    k(f's_lshl_b32 s64, s{sS}, 18\ns_lshl_b32 s65, s{sW}, 16\ns_add_u32 s64, s64, s65\ns_add_u32 s64, s64, {WS_O}')
    def old(i):
        if i and i % 4 == 0: k('s_add_u32 s64, s64, 4096')
        k(f'buffer_load_dwordx4 {vr(LD+4*(i%32),4)}, v{vL16}, {WSR}, s64 offen offset:{1024*(i%4)} sc1')
    for i in range(32): old(i)
    for i in range(64):
        k(f'v_mfma_f32_32x32x16_bf16 {vr(AO,16)}, a[{4*i}:{4*i+3}], {vr(LD+4*(i%32),4)}, {0 if i == 0 else vr(AO,16)}')
        if i < 32: old(i + 32)
    reduce(AO, RED_O - RED_G, AO)
    rnd(AO)
    for i in range(4): k(f'v_mul_f32 v{AO+i}, v{AO+i}, v{GV+i}')
    rnd(AO)
    for i in range(2): k(f'v_lshlrev_b32 v{TT+4+2*i}, 16, v{XR+i}\nv_and_b32 v{TT+5+2*i}, 0xffff0000, v{XR+i}')
    for i in range(4): k(f'v_add_f32 v{AO+i}, v{AO+i}, v{TT+4+i}')
    k(f'v_cvt_pk_bf16_f32 v{TT+8}, v{AO}, v{AO+1}\nv_cvt_pk_bf16_f32 v{TT+9}, v{AO+2}, v{AO+3}')
    k(f'buffer_store_dwordx2 {vr(TT+8,2)}, v{vX}, {OR_}, s23 offen')
    k(f's_add_u32 s{sS}, s{sS}, 6\ns_cmp_lt_u32 s{sS}, 64\ns_cbranch_scc1 W_loop')
```

```python
import re

def regs_of(tok):
    tok = tok.strip()
    neg = tok.lstrip('-').replace('abs(', '').replace(')', '').replace('|', '')
    m = re.fullmatch(r'([vas])\[(\d+):(\d+)\]', neg)
    if m:
        return [f'{m.group(1)}{i}' for i in range(int(m.group(2)), int(m.group(3)) + 1)]
    if re.fullmatch(r'[vas]\d+', neg):
        return [neg]
    if neg in ('vcc', 'vcc_lo', 'vcc_hi'): return ['vcc']
    if neg in ('exec', 'exec_lo', 'exec_hi'): return ['exec']
    if neg == 'm0': return ['m0']
    return []

TRANS = ('v_exp_f32', 'v_log_f32', 'v_rcp_f32', 'v_rsq_f32', 'v_sqrt_f32', 'v_sin_f32', 'v_cos_f32', 'v_rcp_iflag_f32')

class Ins:
    __slots__ = ('text', 'op', 'kind', 'dst', 'src', 'srcC', 'passes', 'dpp', 'wide_store', 'ab')

def parse(text):
    t = text.split(';')[0].strip()
    parts = t.split(None, 1)
    op = parts[0]
    rest = parts[1] if len(parts) > 1 else ''
    ops = [x.strip() for x in re.split(r',(?![^\[]*\])', rest)] if rest else []
    mods = ''
    if ops:
        last = ops[-1].split(None, 1)
        ops[-1] = last[0]
        mods = last[1] if len(last) > 1 else ''
    I = Ins(); I.text = text; I.op = op; I.dst = []; I.src = []; I.srcC = []; I.passes = 0
    I.dpp = False; I.wide_store = False; I.ab = []
    R = [regs_of(o) for o in ops]
    flat = lambda L: [r for x in L for r in x]
    if op.startswith('v_mfma') or op.startswith('v_smfmac'):
        I.kind = 'mfma'
        I.passes = 8 if '32x32' in op else 4
        I.dst = R[0]
        I.ab = R[1] + R[2]
        if op.startswith('v_smfmac'):
            I.ab = I.ab + R[3]; I.srcC = R[0]
        else:
            I.srcC = R[3]
        I.src = I.ab + I.srcC
    elif op.startswith('ds_'):
        I.kind = 'ds'
        if 'read' in op or 'bpermute' in op or 'permute' in op or 'swizzle' in op:
            I.dst = R[0]; I.src = flat(R[1:])
        else:
            I.src = flat(R)
    elif op.startswith('buffer_') or op.startswith('global_'):
        I.kind = 'vmem'
        if op in ('buffer_inv', 'buffer_wbl2'):
            pass
        elif 'lds' in mods.split() or '_lds_' in op:
            I.src = flat(R) + ['m0']
        elif '_load' in op:
            I.dst = R[0]; I.src = flat(R[1:])
        elif 'atomic' in op and 'sc0' in mods.split():
            if op.startswith('buffer_'): I.dst = R[0]; I.src = flat(R)
            else: I.dst = R[0]; I.src = flat(R[1:])
        else:
            I.src = flat(R)
            if 'x3' in op or 'x4' in op:
                I.wide_store = True
                I.ab = R[0] if op.startswith('buffer_') else R[1]
    elif op.startswith('s_load') or op in ('s_memtime', 's_memrealtime') or op.startswith('s_buffer_load'):
        I.kind = 'smem'; I.dst = R[0]; I.src = flat(R[1:])
    elif op.startswith('v_'):
        I.kind = 'valu'
        I.dpp = ('dpp' in op) or ('quad_perm' in mods) or ('row_' in mods)
        if op.startswith('v_permlane') and 'swap' in op:
            I.dst = R[0] + R[1]; I.src = R[0] + R[1]
        elif op.startswith('v_cmp'):
            I.dst = R[0]; I.src = flat(R[1:])
        elif op.startswith('v_add_co') or op.startswith('v_sub_co') or op.startswith('v_addc_co') or op.startswith('v_subb_co'):
            I.dst = R[0] + R[1]; I.src = flat(R[2:])
        else:
            I.dst = R[0]; I.src = flat(R[1:])
            if op.startswith('v_fmac') or op.startswith('v_dot2c') or I.dpp or op.startswith('v_writelane'):
                I.src = I.src + R[0]
            if op.startswith('v_cndmask') and len(ops) == 3: I.src.append('vcc')
    elif op.startswith('s_'):
        I.kind = 'salu'
        if op.startswith('s_cmp') or op.startswith('s_cbranch') or op in ('s_branch', 's_barrier', 's_nop', 's_waitcnt', 's_endpgm', 's_sleep', 's_setprio'):
            I.src = flat(R)
        else:
            I.dst = R[0] if R else []; I.src = flat(R[1:])
            if 'saveexec' in op: I.dst = I.dst + ['exec']
    else:
        raise ValueError('cannot parse: ' + text)
    return I

class K:
    def __init__(self):
        self.out = []
        self.vm = []
        self.lg = []
        self.smem = set()
        self.hist = []
        self.n = 0
        self.nlab = 0
        self.stats = {}
        self.sq = []
    def side(self, text, tag=None):
        for ln in text.split('\n'):
            if ln.strip(): self.sq.append((ln.strip(), tag))
    def _emit_side(self, i):
        t, tag = self.sq.pop(i)
        q, self.sq = self.sq, []
        self(t)
        self.sq = q
    def gap(self, n=1):
        for _ in range(n):
            for pre in ('ds_', 'buffer_'):
                for i, (t, tag) in enumerate(self.sq):
                    if t.startswith(pre):
                        self._emit_side(i); break
    def drain(self):
        while self.sq: self._emit_side(0)
    def _side_deps(self, I):
        src = set(I.src); dst = set(I.dst)
        while True:
            hit = None
            for i, (t, tag) in enumerate(self.sq):
                P = parse(t)
                if set(P.dst) & (src | dst) or set(P.src) & dst: hit = i; break
            if hit is None: return
            self._emit_side(hit)
    def raw(self, s):
        self.out.append(s)
    def comment(self, s):
        self.out.append('    ; ' + s)
    def newlabel(self, b='L'):
        self.nlab += 1
        return f'{b}_{self.nlab}'
    def label(self, name):
        self.out.append(name + ':')
    def _push(self, text, I=None):
        if I is None: I = parse(text)
        self.out.append('    ' + text)
        w = 1
        if I.op == 's_nop': w = int(text.split()[1]) + 1
        self.hist.append((I, self.n))
        self.n += w
        if len(self.hist) > 40: self.hist.pop(0)
        self.stats[I.kind] = self.stats.get(I.kind, 0) + 1
    def wait(self, vm=None, lg=None):
        p = []
        if vm is not None and vm < len(self.vm):
            p.append(f'vmcnt({vm})'); self.vm = self.vm[len(self.vm) - vm:] if vm else []
        if lg is not None and (lg < len(self.lg) or (lg == 0 and self.smem)):
            p.append(f'lgkmcnt({lg})'); self.lg = self.lg[len(self.lg) - lg:] if lg else []
            if lg == 0: self.smem = set()
        if p: self._push('s_waitcnt ' + ' '.join(p))
    def force_wait(self, vm=None, lg=None):
        p = []
        if vm is not None:
            p.append(f'vmcnt({vm})'); self.vm = self.vm[len(self.vm) - vm:] if vm and vm < len(self.vm) else ([] if not vm else self.vm)
        if lg is not None:
            p.append(f'lgkmcnt({lg})'); self.lg = self.lg[len(self.lg) - lg:] if lg and lg < len(self.lg) else ([] if not lg else self.lg)
            if lg == 0: self.smem = set()
        self._push('s_waitcnt ' + ' '.join(p))
    def _need(self, q, regs):
        idx = -1
        for i, d in enumerate(q):
            if d & regs: idx = i
        return None if idx < 0 else len(q) - 1 - idx
    def _autowait(self, I):
        touch = set(I.src) | set(I.dst)
        vm = self._need(self.vm, touch)
        lg = self._need(self.lg, touch)
        if self.smem & touch: lg = 0
        if lg is not None and self.smem: lg = 0
        if vm is not None: vm = min(vm, 63)
        if lg is not None: lg = min(lg, 15)
        self.wait(vm, lg)
    def _hazard(self, I):
        need = 0
        src = set(I.src); dst = set(I.dst); touch = src | dst
        for (P, idx) in self.hist:
            dist = self.n - idx - (int(P.text.split()[1]) + 1 if P.op == 's_nop' else 1)
            pd = set(P.dst)
            req = 0
            if P.kind == 'valu':
                vd = {r for r in pd if r[0] in 'va' and r != 'vcc'}
                sd = {r for r in pd if r[0] == 's' or r == 'vcc'}
                if I.kind == 'mfma' and vd & src: req = max(req, 2)
                if I.kind == 'valu' and I.dpp and vd & src: req = max(req, 2)
                if I.kind == 'valu' and I.op.startswith('v_permlane') and vd & src: req = max(req, 2)
                if I.kind == 'valu' and (I.op.startswith('v_readlane') or I.op.startswith('v_readfirstlane')) and vd & src: req = max(req, 1)
                if P.op.replace('_e32', '').replace('_e64', '') in TRANS and I.kind == 'valu' and vd & src: req = max(req, 1)
                if I.kind == 'vmem' and sd & src: req = max(req, 5)
                if I.kind == 'valu' and sd & src: req = max(req, 4 if I.op.startswith('v_readlane') or I.op.startswith('v_writelane') else 2)
                if I.kind == 'salu' and sd & src: req = max(req, 1)
                if 'exec' in pd: req = max(req, 5)
            if P.kind == 'mfma':
                p8 = P.passes == 8
                if I.kind == 'mfma':
                    if pd & set(I.ab): req = max(req, 12 if p8 else 8)
                    if pd & set(I.srcC):
                        if not (P.dst == I.srcC and P.op == I.op): req = max(req, 10 if p8 else 6)
                    elif pd & dst: req = max(req, 10 if p8 else 6)
                elif I.kind in ('valu', 'vmem', 'ds'):
                    if pd & touch: req = max(req, 12 if p8 else 8)
                    if set(P.srcC) & dst: req = max(req, 7 if p8 else 3)
            if P.kind == 'vmem' and P.wide_store and set(P.ab) & dst: req = max(req, 2)
            if P.kind == 'salu' and 'm0' in pd and 'm0' in src and I.kind in ('vmem', 'ds'): req = max(req, 1)
            need = max(need, req - dist)
        while need > 0:
            k = min(need, 16)
            self._push(f's_nop {k-1}')
            need -= k
    def __call__(self, text):
        for ln in text.split('\n'):
            ln = ln.strip()
            if not ln: continue
            if ln.endswith(':'):
                self.label(ln[:-1]); continue
            if ln.startswith(';'):
                self.comment(ln[1:].strip()); continue
            I = parse(ln)
            if I.op == 's_waitcnt':
                raise ValueError('use wait()/force_wait()')
            if self.sq: self._side_deps(I)
            self._autowait(I)
            self._hazard(I)
            self._push(ln, I)
            if I.kind == 'vmem': self.vm.append(set(I.dst))
            elif I.kind == 'ds': self.lg.append(set(I.dst))
            elif I.kind == 'smem': self.smem |= set(I.dst)
        return self
    def flush_hazards(self, n=None):
        need = 0
        for (P, idx) in self.hist:
            dist = self.n - idx - (int(P.text.split()[1]) + 1 if P.op == 's_nop' else 1)
            req = 0
            if P.kind == 'mfma': req = 12 if P.passes == 8 else 8
            elif P.kind == 'valu':
                req = 5 if any(r[0] == 's' or r in ('vcc', 'exec') for r in P.dst) else 2
            elif P.kind == 'vmem' and P.wide_store: req = 2
            need = max(need, req - dist)
        if need > 0: self._push(f's_nop {need-1}')
    def state(self):
        return ([set(x) for x in self.vm], [set(x) for x in self.lg])
    def set_state(self, st):
        self.vm = [set(x) for x in st[0]]; self.lg = [set(x) for x in st[1]]; self.smem = set()
    def text(self):
        return '\n'.join(self.out) + '\n'
```

```python
WS_KV   = 0x0000000
WS_Q    = 0x2000000
WS_O    = 0x3000000
WS_XN   = 0x4000000
WS_H    = 0x4400000
WS_G    = 0x4C00000
WS_KVM  = 0x5400000
WS_STRM = 0x6000000
WS_SLAB = 0x6400000
WS_AG   = 0x6500000
WS_MEMH = 0x6600000
SL = 10368
KA_X, KA_MEM0, KA_WQ, KA_WK, KA_WV, KA_WO, KA_SEG, KA_BX, KA_WG, KA_WU, KA_WD, KA_OUT, KA_DBG, KA_WS = [8*i for i in range(14)]
SL2 = 5248
WS_XG   = 0x6580000
WS_M0   = 0x65C0000
DBG_ID  = 192
DBG_PR  = 64
WS_FLG  = 0x6800000
FL_KV   = WS_FLG + 0x3000
FL_G1   = WS_FLG + 0x400
FL_PR   = WS_FLG + 0x1000
FL_O    = WS_FLG + 0x4000
FL_END  = WS_FLG + 0x4000 + 64*8*128
DBG_CNT = 128
```

```python
from kfw import K
from layout import *
def ln_kernel(k, name):
    k.raw(f'.globl {name}\n.p2align 8\n.type {name},@function\n{name}:')
    k('s_cmp_ge_u32 s2, 128\ns_cbranch_scc1 LN_done')
    k(f's_load_dwordx2 s[4:5], s[0:1], {KA_X}\ns_load_dwordx2 s[8:9], s[0:1], {KA_WS}')
    k('s_mov_b32 s6, 2621440\ns_mov_b32 s7, 0x20000\ns_mov_b32 s10, 0x10000000\ns_mov_b32 s11, 0x20000')
    k('v_lshrrev_b32 v1, 4, v0\ns_lshl_b32 s3, s2, 4\nv_add_u32 v1, s3, v1\nv_and_b32 v2, 15, v0')
    k('v_mul_u32_u24 v3, 1280, v1\nv_lshl_add_u32 v3, v2, 4, v3')
    k.wait(lg=0)
    for i in range(5): k(f'buffer_load_dwordx4 v[{8+4*i}:{11+4*i}], v3, s[4:7], 0 offen offset:{256*i}')
    k('v_lshlrev_b32 v4, 4, v0\ns_lshl_b32 s12, s2, 12\nv_add_u32 v4, s12, v4')
    k('v_mov_b64 v[72:73], 0\nv_mov_b64 v[74:75], 0\nv_mov_b32 v76, -1\nv_mov_b32 v77, -1\nv_mov_b32 v78, -1\nv_mov_b32 v79, -1')
    nfl = (FL_END - WS_FLG + 4095) // 4096
    nsl = (64*SL2 + 4095) // 4096
    assert nfl + nsl + 8 <= 128
    k(f's_mov_b32 s13, {WS_FLG}\ns_cmp_lt_u32 s2, {nfl}\ns_cbranch_scc1 LN_z')
    k(f's_mov_b32 s13, {WS_SLAB - 4096*nfl}\ns_cmp_lt_u32 s2, {nfl+nsl}\ns_cbranch_scc1 LN_z')
    k(f's_cmp_ge_u32 s2, {nfl+nsl+8}\ns_cbranch_scc1 LN_nz')
    k(f's_sub_u32 s14, s2, {nfl+nsl}\ns_and_b32 s15, s14, 1\ns_lshl_b32 s15, s15, 12\ns_bfe_u32 s16, s14, 0x10001\ns_lshl_b32 s16, s16, 15\ns_add_u32 s15, s15, s16')
    k(f's_cmp_ge_u32 s14, 4\ns_cselect_b32 s13, {WS_XG - WS_AG}, 0\ns_add_u32 s13, s13, {WS_AG}\ns_add_u32 s13, s13, s15\ns_sub_u32 s13, s13, s12')
    k('v_mov_b64 v[72:73], v[76:77]\nv_mov_b64 v[74:75], v[76:77]')
    k.label('LN_z')
    k('v_add_u32 v4, s13, v4')
    k('buffer_store_dwordx4 v[72:75], v4, s[8:11], 0 offen')
    k.label('LN_nz')
    k.vm = [e for e in k.vm if e]
    for j in range(20):
        k(f'v_lshlrev_b32 v{32+2*j}, 16, v{8+j}\nv_and_b32 v{33+2*j}, 0xffff0000, v{8+j}')
    def rowsum(r):
        for sh in (8, 4, 2, 1): k(f'v_add_f32_dpp v{r}, v{r}, v{r} row_ror:{sh} row_mask:0xf bank_mask:0xf')
    k('v_add_f32 v5, v32, v33')
    for j in range(2, 40): k(f'v_add_f32 v5, v5, v{32+j}')
    rowsum(5)
    k('s_mov_b32 s12, 0x3acccccd')
    k('v_mul_f32 v5, s12, v5')
    k('v_sub_f32 v7, v32, v5\nv_mul_f32 v6, v7, v7')
    for j in range(1, 40): k(f'v_sub_f32 v7, v{32+j}, v5\nv_fmac_f32 v6, v7, v7')
    rowsum(6)
    rb = lambda r: k(f'v_cvt_pk_bf16_f32 v{r}, v{r}, v{r}\nv_lshlrev_b32 v{r}, 16, v{r}')
    k('v_mul_f32 v6, s12, v6'); rb(6); rb(5)
    k('v_add_f32 v6, 0x3727c5ac, v6'); rb(6)
    k('v_sqrt_f32 v6, v6'); rb(6)
    k('v_rcp_f32 v7, v6')
    k('v_fma_f32 v6, -v6, v7, 1.0\nv_fmac_f32 v7, v6, v7')
    for j in range(20):
        a, b = 32 + 2*j, 33 + 2*j
        k(f'v_sub_f32 v{a}, v{a}, v5\nv_sub_f32 v{b}, v{b}, v5\nv_cvt_pk_bf16_f32 v{a}, v{a}, v{b}')
        k(f'v_and_b32 v{b}, 0xffff0000, v{a}\nv_lshlrev_b32 v{a}, 16, v{a}\nv_mul_f32 v{a}, v{a}, v7\nv_mul_f32 v{b}, v{b}, v7')
        k(f'v_cvt_pk_bf16_f32 v{8+j}, v{a}, v{b}')
    k('v_lshrrev_b32 v4, 5, v1\nv_mul_u32_u24 v4, 40960, v4\nv_and_b32 v1, 31, v1\nv_lshl_add_u32 v4, v1, 4, v4')
    k('v_lshrrev_b32 v1, 1, v2\nv_lshl_add_u32 v4, v1, 10, v4\nv_and_b32 v1, 1, v2\nv_lshl_add_u32 v4, v1, 9, v4')
    for i in range(5):
        k(f's_mov_b32 s12, {WS_XN + 8192*i}\nbuffer_store_dwordx4 v[{8+4*i}:{11+4*i}], v4, s[8:11], s12 offen')
    k.label('LN_done')
    k('s_endpgm')

def ln_loads(k, sN, XP):
    k(f's_mov_b32 s16, s{XP}\ns_mov_b32 s17, s{XP+1}\ns_mov_b32 s18, 2621440')
    k(f's_lshl_b32 s64, s{sN}, 2\ns_add_u32 s64, s64, s4\ns_lshl_b32 s64, s64, 2\nv_lshrrev_b32 v116, 4, v7\nv_add_u32 v116, s64, v116\nv_and_b32 v117, 15, v7')
    k('v_mul_u32_u24 v118, 1280, v116\nv_lshl_add_u32 v118, v117, 4, v118')
    for i in range(5): k(f'buffer_load_dwordx4 v[{96+4*i}:{99+4*i}], v118, s[16:19], 0 offen offset:{256*i}')
def ln_compute(k):
    M, V, T = 72, 73, 74
    for j in range(20):
        k(f'v_lshlrev_b32 v{32+2*j}, 16, v{96+j}\nv_and_b32 v{33+2*j}, 0xffff0000, v{96+j}')
    def rowsum(r):
        for sh in (8, 4, 2, 1): k(f'v_add_f32_dpp v{r}, v{r}, v{r} row_ror:{sh} row_mask:0xf bank_mask:0xf')
    k(f'v_add_f32 v{M}, v32, v33')
    for j in range(2, 40): k(f'v_add_f32 v{M}, v{M}, v{32+j}')
    rowsum(M)
    k('s_mov_b32 s64, 0x3acccccd')
    k(f'v_mul_f32 v{M}, s64, v{M}')
    k(f'v_sub_f32 v{T}, v32, v{M}\nv_mul_f32 v{V}, v{T}, v{T}')
    for j in range(1, 40): k(f'v_sub_f32 v{T}, v{32+j}, v{M}\nv_fmac_f32 v{V}, v{T}, v{T}')
    rowsum(V)
    rb = lambda r: k(f'v_cvt_pk_bf16_f32 v{r}, v{r}, v{r}\nv_lshlrev_b32 v{r}, 16, v{r}')
    k(f'v_mul_f32 v{V}, s64, v{V}'); rb(V); rb(M)
    k(f'v_add_f32 v{V}, 0x3727c5ac, v{V}'); rb(V)
    k(f'v_sqrt_f32 v{V}, v{V}'); rb(V)
    k(f'v_rcp_f32 v{T}, v{V}')
    k(f'v_fma_f32 v{V}, -v{V}, v{T}, 1.0\nv_fmac_f32 v{T}, v{V}, v{T}')
    for j in range(20):
        a, b = 32 + 2*j, 33 + 2*j
        k(f'v_sub_f32 v{a}, v{a}, v{M}\nv_sub_f32 v{b}, v{b}, v{M}\nv_cvt_pk_bf16_f32 v{a}, v{a}, v{b}')
        k(f'v_and_b32 v{b}, 0xffff0000, v{a}\nv_lshlrev_b32 v{a}, 16, v{a}\nv_mul_f32 v{a}, v{a}, v{T}\nv_mul_f32 v{b}, v{b}, v{T}')
        k(f'v_cvt_pk_bf16_f32 v{96+j}, v{a}, v{b}')
    k('v_lshrrev_b32 v118, 5, v116\nv_mul_u32_u24 v118, 40960, v118\nv_and_b32 v116, 31, v116\nv_lshl_add_u32 v118, v116, 4, v118')
    k('v_lshrrev_b32 v116, 1, v117\nv_lshl_add_u32 v118, v116, 10, v118\nv_and_b32 v116, 1, v117\nv_lshl_add_u32 v118, v116, 9, v118')
    for i in range(5):
        k(f's_mov_b32 s64, {WS_XN + 8192*i}\nbuffer_store_dwordx4 v[{96+4*i}:{99+4*i}], v118, s[8:11], s64 offen sc1')
```

```python
from kfw import K
from layout import *
OPT = {}
STAMP = False
vL16, vAF, vLW, vRS, vAGS, vOW, vKV, vIDX = range(8)
vPZ, vZ1, vZ2, vPZ2, vPAT = 8, 9, 10, 11, 12
vM, vT1, vT2 = 13, 14, 15
AW, QA, KA, VA, VT, QB, KF, X, KT, SLa, SLb = 16, 28, 36, 44, 52, 60, 64, 68, 72, 80, 88
QK8 = QB
RES0 = 96
LDS_SMT, LDS_SMM, LDS_W = 10240, 14336, 16384
NLDS = 18
def vr(b, n): return f'v[{b}:{b+n-1}]'
sJ, sW, sG, sSTEP, sTAG, sKO, sVO, sSL1, sSL0 = 3, 4, 5, 20, 21, 22, 23, 24, 25
sRS = 26
sRING, sREARM, sE1, sE0, sL1, sL0, sAGW, sXGW, sAGB, sXGB, sXGO = 30, 31, 32, 33, 34, 35, 36, 37, 38, 39, 6
sBUD, sEXP = 40, 41
sMB0, sMSEL, sMS0, sMB1 = 42, 44, 52, 54
sW1024, sW4, sW256, sW512, sC, sPRO, sXP, sEXN = 56, 57, 58, 59, 60, 61, 62, 63
sT = 64
sONE = 98
sKVF, sKVB = 7, 96
WSR, TR, DBR = 's[8:11]', 's[12:15]', 's[16:19]'

SEQ1 = [(m, p, te) for p in range(5) for (m, te) in (('q', 0), ('q', 1), ('k', 0), ('k', 1), ('v', 0), ('v', 1))]
SEQ2 = [(m, p, te) for p in range(5, 10) for (m, te) in (('q', 0), ('q', 1), ('k', 0), ('k', 1))]
QKSEQ = SEQ1 + SEQ2
VSEQ = [('v', p, te) for p in range(5, 10) for te in range(2)]
OSEQ = [('o', tt, k2) for tt in (4, 0, 1, 2, 3) for k2 in range(2)]
PLAN = {}
def plan():
    ld = [(QKSEQ[i], QK8 if n % 2 == 0 else SLa) for n, i in enumerate((3, 8, 12, 16, 20, 24, 28, 32, 36, 40, 44, 48))]
    ld += [(VSEQ[1], SLb), (VSEQ[3], SLa), (VSEQ[4], SLb), (VSEQ[6], SLa), (VSEQ[7], SLb), (VSEQ[9], SLa)]
    assert len(ld) == NLDS
    for i, (f, r) in enumerate(ld): PLAN[f] = ('lds', i, r)
    res = [f for f in QKSEQ + VSEQ + OSEQ if f not in PLAN]
    assert len(res) == 52
    a, b = ('v', 0, 0), ('v', 0, 1)
    res = [f for f in res if f not in (a, b)] + [a, b]
    for i, f in enumerate(res):
        PLAN[f] = ('res', i, f'a[{8*i}:{8*i+7}]' if i < 32 else vr(RES0 + 8*(i-32), 8))
plan()
def breg(f):
    p = PLAN[f]
    return p[2] if p[0] == 'res' else vr(p[2], 8)
NEXT, FIRST, _last = {}, {}, {}
for f in QKSEQ + VSEQ + OSEQ:
    if PLAN[f][0] == 'lds':
        r = PLAN[f][2]
        if r not in FIRST: FIRST[r] = f
        else: NEXT[_last[r]] = f
        _last[r] = f

def load_frag(k, f, side=False):
    e = k.side if side else k
    src, i, r = PLAN[f]
    e(f'ds_read_b128 {vr(r,4)}, v{vLW} offset:{i*2048}')
    e(f'ds_read_b128 {vr(r+4,4)}, v{vLW} offset:{i*2048+1024}')
def smf(k, acc, areg, f):
    k(f'v_smfmac_f32_16x16x64_bf16 {vr(acc,4)}, {vr(areg,4)}, {breg(f)}, v{vIDX}')
    if f in NEXT: load_frag(k, NEXT[f], True)
def zero(k, b, n):
    for i in range(0, n, 2): k(f'v_mov_b64 {vr(b+i,2)}, 0')
def zero16(k, b):
    k(f'v_mfma_f32_32x32x8_bf16 {vr(b,16)}, {vr(vPZ,2)}, {vr(vZ2,2)}, 0')
def wait_tag(k, name):
    for q, kw in ((k.vm, 'vm'), (k.lg, 'lg')):
        n = k._need(q, {name})
        if n is not None: k.wait(**{kw: n})
def NT(): return OPT.get('kvbits', ' sc1')
def stamp(k, i):
    if STAMP: k(f's_memtime s[{72+2*i}:{73+2*i}]')
def aread(p, slot): return f'ds_read_b128 {vr(AW+4*slot,4)}, v{vAF} offset:{p*1024}'
ACCQ = {'q': QA, 'k': KA, 'v': VA}

class VFill:
    def __init__(self, k): self.k = k; self.i = 0
    def __call__(self, n=1, g=1):
        k = self.k
        for _ in range(n):
            if self.i >= len(VSEQ): return
            f = VSEQ[self.i]; p, te = f[1], f[2]
            slot = (p + 5) % 3
            smf(k, VA + 4*te, AW + 4*slot, f)
            if te == 1 and p + 3 < 10: k.sq.insert(0, (aread(p + 3, slot), None))
            k.gap(g)
            self.i += 1

def body(k, role, sc, tagL):
    S = ' sc1' if sc else ''
    L = lambda s: f'{s}_{tagL}'
    def cut(name):
        if OPT.get('upto') == name:
            k.drain(); k.flush_hazards(); k(f's_branch {L("R_solo")}')
    def gather(land, s1, s0, a16):
        k(f'buffer_load_dwordx4 {vr(land,4)}, v{vL16}, {WSR}, s{s1} offen sc1')
        k(f'buffer_load_dwordx4 {vr(land+4,4)}, v{a16}, {WSR}, s{s0} offen sc1')
    def chk8(r):
        return [f'v_max3_u32 v{vT1}, v{r}, v{r+1}, v{r+2}', f'v_max3_u32 v{vT1}, v{vT1}, v{r+3}, v{r+4}', f'v_max3_u32 v{vT1}, v{vT1}, v{r+5}, v{r+6}',
                f'v_max_u32 v{vT1}, v{vT1}, v{r+7}', f'v_cmp_eq_u32 vcc, -1, v{vT1}']
    def put(land, off):
        k(f'ds_write_b128 v{vT2}, {vr(land,4)} offset:{off}')
        k('s_mov_b64 exec, 0xffff'); k(f'ds_write_b128 v{vM}, {vr(land+4,4)} offset:{off}'); k('s_mov_b64 exec, -1')
    k.label(L('R_top'))
    k('s_barrier')
    stamp(k, 0)
    if STAMP: k('s_memrealtime s[86:87]')
    for p in range(3): k(aread(p, p))
    LI, LC = OPT.get('li', -2), OPT.get('lc', 17)
    LB = LC + OPT.get('lbd', 6)
    F = OPT.get('faridx', LB)
    if LI == -1: gather(SLb, sL1, sL0, X)
    L2 = OPT.get('l2')
    if L2 == -1: gather(VT, sL1, sL0, X)
    cut('top')
    held = []
    for idx, f in enumerate(QKSEQ):
        m, p, te = f
        smf(k, ACCQ[m] + 4*te, AW + 4*(p % 3), f)
        if idx + 1 == len(QKSEQ) or QKSEQ[idx+1][1] != p:
            nk = p + 3 if p + 3 < 10 else p + 3 - 5
            if 5 <= p + 3 and idx < LB: held.append(aread(nk, p % 3))
            else: k.sq.insert(0, (aread(nk, p % 3), None))
        if idx == LB:
            wait_tag(k, 'lw')
            if not OPT.get('x_b'): k('s_barrier')
            for h in reversed(held): k.sq.insert(0, (h, None))
            if OPT.get('dump') is not None:
                k(f's_cmp_lg_u32 s{sSTEP}, {OPT["dump"]}\ns_cbranch_scc1 {L("R_nod")}\ns_cmp_lg_u32 s{sJ}, 0\ns_cbranch_scc1 {L("R_nod")}')
                st_ = k.state()
                k(f's_mul_i32 s{sT}, s{sG}, 10240\ns_add_u32 s{sT}, s{sT}, {WS_MEMH}')
                for i in range(3):
                    k(f'ds_read_b128 v[248:251], v{vT2} offset:{4096*i}')
                    k(f'buffer_store_dwordx4 v[248:251], v{vT2}, {WSR}, s{sT} offen')
                    k(f's_add_u32 s{sT}, s{sT}, 4096')
                    k.force_wait(vm=0, lg=0)
                k.set_state(st_)
                k.label(L('R_nod'))
        k.gap(1)
        if idx == LI: gather(SLb, sL1, sL0, X)
        if idx == L2: gather(VT, sL1, sL0, X)
        if idx == LC and not OPT.get('x_w'): k(f'ds_write_b128 v{vT2}, {vr(SLb,4)} offset:5120')
        if idx == LC + OPT.get('w2d', 1) and not OPT.get('x_w'):
            k('s_mov_b64 exec, 0xffff'); k(f'ds_write_b128 v{vM}, {vr(SLb+4,4)} offset:5120'); k('s_mov_b64 exec, -1')
            k.lg[-1] |= {'lw'}
        if LC <= idx < LC + 5: k(chk8(SLb)[idx - LC])
        if idx == LC + 5:
            if not OPT.get('x_c'): k(f's_cbranch_vccnz {L("R_slowl")}')
            k.label(L('R_contl'))
            if OPT.get('st_l'): stamp(k, 1)
            load_frag(k, FIRST[SLb], True)
        if idx == max(LI, 0) + 1: k.side(f'ds_read_b128 {vr(X,4)}, v{vT2} offset:{LDS_SMT}')
        if idx == F:
            if not OPT.get('nofar'):
                k(f'buffer_load_dwordx4 {vr(VT,4)}, v{vKV}, {WSR}, s{sVO} offen{NT()}')
                k(f'buffer_load_dwordx4 {vr(VT+4,4)}, v{vKV}, {WSR}, s{sVO} offen offset:128{NT()}')
        if idx == F + 1 and not OPT.get('noexp'):
            k(f'buffer_store_dwordx4 {vr(X,4)}, v{vT2}, {WSR}, s{sEXP} offen sc1')
        if idx == F + 2 and role in '01':
            k(f'v_mov_b32 v{vT1}, -1')
        if idx == F + 3 and role in '01':
            k(f's_add_u32 s{sT}, s{sREARM}, s{sAGB}\ns_add_u32 s{sT+1}, s{sREARM}, s{sXGB}')
            k(f'buffer_store_dword v{vT1}, v{vAGS}, {WSR}, s{sT} offen{S}')
            k(f'buffer_store_dword v{vT1}, v{vAGS}, {WSR}, s{sT+1} offen sc1')
        if idx == F + 3 and role == '3' and not OPT.get('noflag'):
            k(f's_mov_b64 exec, 1\nbuffer_store_dword v{vRS}, off, {WSR}, s{sPRO} sc1\ns_mov_b64 exec, -1')
        if role == '3' and OPT.get('kvflag'):
            if idx == F - 2: k(f'v_and_b32 v{vT1}, 16, v{vL16}')
            if idx == F - 1: k(f'v_lshlrev_b32 v{vT1}, 7, v{vT1}')
            if idx == F + 2: k(f'buffer_load_dword v{vAGS}, v{vT1}, {WSR}, s{sKVF} offen sc1')
        if idx == 41: k(f'v_cndmask_b32 v{vPZ}, v{vZ1}, v{vPAT}, s[{sMS0}:{sMS0+1}]')
        if idx == 42: k(f'v_cndmask_b32 v{vPZ2}, v{vZ1}, v{vPAT}, s[{sMS0}:{sMS0+1}]')
        if idx == 43: k(f'v_add_u32 v{vT1}, s{sW4}, v{vL16}')
        cut(f'q{idx}')
    cut('qk')
    if not OPT.get('st_l'): stamp(k, 1)
    V = VFill(k)
    def half(A, x):
        k(f'v_add_f32 v{A}, v{A}, v{A+2}\nv_add_f32 v{A+1}, v{A+1}, v{A+3}')
        k(f'v_cvt_pk_bf16_f32 v{x}, v{A}, v{A+1}')
    V(2)
    half(QA, X); k.gap(); half(QA+4, X+1); k.gap(); half(KA, X+2)
    k(f'v_mfma_f32_16x16x16_bf16 {vr(QA,4)}, {vr(X,2)}, {vr(vPZ,2)}, 0')
    k(f'v_add_f32 v{KA+4}, v{KA+4}, v{KA+6}\nv_add_f32 v{KA+5}, v{KA+5}, v{KA+7}')
    k(f'v_mfma_f32_16x16x16_bf16 {vr(QA+4,4)}, {vr(X,2)}, {vr(vZ2,2)}, 0')
    k(f'v_cvt_pk_bf16_f32 v{X+3}, v{KA+4}, v{KA+5}')
    V(1)
    k(f'v_mfma_f32_16x16x16_bf16 {vr(KA,4)}, {vr(X+2,2)}, {vr(vPZ,2)}, 0')
    k.gap()
    k(f'v_mfma_f32_16x16x16_bf16 {vr(KA+4,4)}, {vr(X+2,2)}, {vr(vZ2,2)}, 0')
    cut('tr')
    for i in range(4): k(f'v_cvt_pk_bf16_f32 v{QB+i}, v{QA+2*i}, v{QA+2*i+1}')
    V(1)
    k(f'v_mfma_f32_16x16x32_bf16 {vr(QA,4)}, {vr(KT,4)}, {vr(QB,4)}, 0')
    k(f'v_cvt_pk_bf16_f32 v{KF}, v{KA}, v{KA+1}\nv_cvt_pk_bf16_f32 v{KF+1}, v{KA+2}, v{KA+3}')
    k(f'v_mfma_f32_16x16x32_bf16 {vr(QA+4,4)}, {vr(KT+4,4)}, {vr(QB,4)}, 0')
    k(f'v_cvt_pk_bf16_f32 v{KF+2}, v{KA+4}, v{KA+5}\nv_cvt_pk_bf16_f32 v{KF+3}, v{KA+6}, v{KA+7}')
    if not OPT.get('o7', 0): k.gap(); k.gap()
    k(f'v_mfma_f32_16x16x32_bf16 {vr(KA,4)}, {vr(KF,4)}, {vr(QB,4)}, 0')
    if not OPT.get('nofar'):
        k(f'buffer_load_dwordx4 {vr(KT,4)}, v{vKV}, {WSR}, s{sKO} offen{NT()}')
        k(f'buffer_load_dwordx4 {vr(KT+4,4)}, v{vKV}, {WSR}, s{sKO} offen offset:128{NT()}')
    cut('s')
    for i in range(4): k(f'v_cndmask_b32 v{QA+i}, v{QA+i}, v{QA+4+i}, s[{sMB1}:{sMB1+1}]')
    k(f'ds_write_b128 v{vT2}, {vr(QA,4)} offset:{LDS_SMT}')
    k(f'v_cndmask_b32 v{KA}, v{KA}, v{KA+1}, s[{sMB1}:{sMB1+1}]')
    k(f'ds_write_b32 v{vT1}, v{KA} offset:{LDS_SMM}')
    k.lg[-1] = {'sw'}
    V(OPT.get('w1', 3), 2)
    wait_tag(k, 'sw')
    k('s_barrier')
    cut('b2')
    k(f'ds_read_b128 {vr(X,4)}, v{vL16} offset:{LDS_SMM}')
    for i, D in enumerate((QA, QA+4, KA, KA+4)):
        k(f'ds_read_b128 {vr(D,4)}, v{vL16} offset:{LDS_SMT+1024*i}')
    while V.i < 10:
        V(1)
        if V.i >= 9: k(f'v_mov_b64 {vr(SLb+2*(V.i-9),2)}, s[{sONE}:{sONE+1}]')
    if OPT.get('pk', 1):
        pk = lambda d, a, b: k(f'v_pk_add_f32 {vr(d,2)}, {vr(a,2)}, {vr(b,2)}')
        pk(X, X, X+2); pk(QA, QA, QA+4); pk(QA+2, QA+2, QA+6)
        k(f'v_add_f32 v{X}, v{X}, v{X+1}')
        pk(KA, KA, KA+4); pk(KA+2, KA+2, KA+6); pk(QA, QA, KA); pk(QA+2, QA+2, KA+2)
    else:
        k(f'v_add_f32 v{X}, v{X}, v{X+1}\nv_add_f32 v{X+2}, v{X+2}, v{X+3}')
        for i in range(4): k(f'v_add_f32 v{QA+i}, v{QA+i}, v{QA+4+i}')
        k(f'v_add_f32 v{X}, v{X}, v{X+2}')
        for i in range(4): k(f'v_add_f32 v{KA+i}, v{KA+i}, v{KA+4+i}')
        for i in range(4): k(f'v_add_f32 v{QA+i}, v{QA+i}, v{KA+i}')
    cut('sum')
    k(f'v_max3_f32 v{vM}, v{QA}, v{QA+1}, v{X}')
    k(f'v_max3_f32 v{vM}, v{QA+2}, v{QA+3}, v{vM}')
    k(f'v_add_f32 v{VA}, v{VA}, v{VA+2}\nv_add_f32 v{VA+1}, v{VA+1}, v{VA+3}')
    k(f'v_max_f32_dpp v{vM}, v{vM}, v{vM} quad_perm:[2,3,0,1] row_mask:0xf bank_mask:0xf')
    k(f'v_mov_b32 v{vT1}, v{vM}')
    k(f'v_add_f32 v{VA+4}, v{VA+4}, v{VA+6}\nv_add_f32 v{VA+5}, v{VA+5}, v{VA+7}')
    k(f'v_permlane16_swap_b32 v{vM}, v{vT1}')
    k(f'v_max_f32 v{vM}, v{vM}, v{vT1}')
    k(f'v_mov_b32 v{vT1}, v{vM}')
    k(f'v_cvt_pk_bf16_f32 v{X+2}, v{VA}, v{VA+1}\nv_cvt_pk_bf16_f32 v{X+3}, v{VA+4}, v{VA+5}')
    k(f'v_permlane32_swap_b32 v{vM}, v{vT1}')
    k(f'v_max_f32 v{vM}, v{vM}, v{vT1}')
    cut('max')
    k(f'v_mul_f32 v{vM}, s{sC}, v{vM}')
    for r in (X, QA, QA+1, QA+2, QA+3): k(f'v_fma_f32 v{r}, s{sC}, v{r}, -v{vM}')
    for i, r in enumerate((X, QA, QA+1, QA+2, QA+3)): k(f'v_exp_f32 v{r}, v{r}')
    k(f'v_mov_b32_dpp v{vT1}, v{X} quad_perm:[2,3,0,1] row_mask:0xf bank_mask:0xf')
    k(f'v_cvt_pk_bf16_f32 v{QB}, v{QA}, v{QA+1}')
    k(f'v_cvt_pk_bf16_f32 v{QB+1}, v{QA+2}, v{QA+3}')
    k(f'v_cvt_pk_bf16_f32 v{vPZ}, v{X}, v{vT1}')
    k(f'v_cvt_pk_bf16_f32 v{vPZ2}, v{X}, v{vT1}')
    k(f'v_mov_b32_dpp v{QB+2}, v{QB} quad_perm:[2,3,0,1] row_mask:0xf bank_mask:0xf')
    cut('exp')
    k(f'v_mfma_f32_16x16x16_bf16 {vr(QA,4)}, {vr(SLb,2)}, {vr(vPZ,2)}, 0')
    k(f'v_mov_b32_dpp v{QB+3}, v{QB+1} quad_perm:[2,3,0,1] row_mask:0xf bank_mask:0xf')
    k(f'v_mfma_f32_16x16x16_bf16 {vr(KA,4)}, {vr(X+2,2)}, {vr(vPZ,2)}, 0')
    k(f'v_lshrrev_b32 v{vT1}, 2, v{vKV}')
    k(f'v_add_u32 v{vT1}, s{sW512}, v{vT1}')
    k(f'v_mfma_f32_16x16x16_bf16 {vr(KA+4,4)}, {vr(X+2,2)}, {vr(vZ2,2)}, 0')
    k(f'v_lshrrev_b32 v{X}, 1, v{vL16}')
    k(f'v_mfma_f32_16x16x32_bf16 {vr(QA,4)}, {vr(SLb,4)}, {vr(QB,4)}, {vr(QA,4)}')
    k(f'v_bfi_b32 v{X}, 24, v{vL16}, v{X}')
    k(f'v_mfma_f32_16x16x32_bf16 {vr(KA,4)}, {vr(VT,4)}, {vr(QB,4)}, {vr(KA,4)}')
    k(f'v_add_u32 v{X}, s{sW512}, v{X}')
    k(f'v_mfma_f32_16x16x32_bf16 {vr(KA+4,4)}, {vr(VT+4,4)}, {vr(QB,4)}, {vr(KA+4,4)}')
    if not OPT.get('pkm', 1): zero16(k, VA)
    k(f'v_rcp_f32 v{vM}, v{QA}')
    cut('pv')
    k(f's_mov_b64 exec, s[{sMB0}:{sMB0+1}]')
    for t in range(2):
        A = KA + 4*t
        if OPT.get('pkm', 1):
            for i in (0, 2): k(f'v_pk_mul_f32 {vr(A+i,2)}, {vr(A+i,2)}, {vr(vM-1,2)} op_sel:[0,1] op_sel_hi:[1,1]')
        else:
            for i in range(4): k(f'v_mul_f32 v{A+i}, v{A+i}, v{vM}')
        k(f'v_cvt_pk_bf16_f32 v{A}, v{A}, v{A+1}\nv_cvt_pk_bf16_f32 v{A+1}, v{A+2}, v{A+3}')
        k(f'ds_write_b64 v{vOW}, {vr(A,2)} offset:{128*t}')
    k('s_mov_b64 exec, -1')
    if OPT.get('pkm', 1): zero16(k, VA)
    zero16(k, QA)
    k.drain()
    k.wait(lg=0)
    k('s_barrier')
    cut('b3')
    k(aread(0, 0)); k(aread(1, 1))
    stage = [f'ds_write_b128 v{X}, {vr(KF,4)} offset:{LDS_SMT}', f'ds_write_b32 v{vT1}, v{X+2} offset:{LDS_SMT+2048}', f'ds_write_b32 v{vT1}, v{X+3} offset:{LDS_SMT+2048+32}']
    k(f's_cmp_eq_u32 s{sSTEP}, 63\ns_cbranch_scc1 {L("R_end")}')
    for o in stage: k.side(o)
    ACC = [VA, VA+4, VT, VT+4, QA]
    PK = [AW+8, QB, QB+1, QB+2, QB+3]
    def post_ops(t):
        A = ACC[t]
        o = [f'v_add_f32 v{A}, v{A}, v{A+2}', f'v_add_f32 v{A+1}, v{A+1}, v{A+3}', f'v_cvt_pk_bf16_f32 v{PK[t]}, v{A}, v{A+1}']
        if t in (0, 1, 3): o.append(f'v_bfi_b32 v{PK[t]}, 1, s{sTAG}, v{PK[t]}')
        return o
    P5 = AW + 8
    fifth = [f'v_permlane32_swap_b32 v{P5}, v{P5+2}', f'v_permlane16_swap_b32 v{P5}, v{P5+1}', f'v_permlane16_swap_b32 v{P5+2}, v{P5+3}', 'STORE0']
    def em(o):
        if o == 'STORE0':
            k('s_mov_b64 exec, 0xffff'); k(f'buffer_store_dwordx4 {vr(P5,4)}, v{vL16}, {WSR}, s{sSL0} offen{S}'); k.vm[-1] = {'st0'}; k('s_mov_b64 exec, -1')
        else: k(o)
    p0, p1, p2, p3, p4 = [post_ops(t) for t in range(5)]
    sched = {4: p0[:2], 5: p0[2:], 6: p1[:2] + fifth[:1], 7: p1[2:] + fifth[1:2], 8: p2[:2] + fifth[2:], 9: p2[2:] + p3[:2]}
    for idx, f in enumerate(OSEQ):
        smf(k, ACC[idx // 2], AW + 4*f[2], f)
        k.gap(1)
        for o in sched.get(idx, []): em(o)
        cut(f'w{idx}')
    for o in p3[2:] + p4: em(o)
    k(f'buffer_store_dwordx4 {vr(QB,4)}, v{vL16}, {WSR}, s{sSL1} offen{S}'); k.vm[-1] = {'st1'}
    k.drain()
    stamp(k, 4)
    cut('wo')
    LAND = [SLa, SLa+4, SLb, SLb+4]
    SEL, RACC = AW, AW+4
    red = role in '01'
    NS = OPT.get('nsets', 2) if role == '0' else 1
    if NS < 2: zero16(k, VA)
    if NS < 3: zero(k, QA, 4)
    if role == '3': k(f'v_mov_b32 v{vRS}, s{sSTEP}')
    if role == '3' and OPT.get('kvflag'):
        k(f'v_cmp_eq_u32 vcc, 0, v{vAGS}\ns_cbranch_vccnz {L("R_slowk")}')
        k.label(L('R_contk'))
        k(f's_add_u32 s{sT}, s{sSTEP}, 3\ns_lshr_b32 s{sT}, s{sT}, 1\ns_min_u32 s{sT}, s{sT}, 31\ns_lshl_b32 s{sT}, s{sT}, 2\ns_add_u32 s{sKVF}, s{sT}, s{sKVB}')
    if red:
        for r in range(4): k(f'v_cndmask_b32 v{SEL+r}, v{vZ1}, v{vPAT}, s[{sMSEL+2*r}:{sMSEL+2*r+1}]')
    k(f's_add_u32 s{sSTEP}, s{sSTEP}, 1')
    if not OPT.get('samekv'): k(f's_add_u32 s{sKO}, s{sKO}, 0x80000\ns_add_u32 s{sVO}, s{sVO}, 0x80000')
    k(f's_add_u32 s{sAGW}, s{sRING}, s{sAGB}\ns_add_u32 s{sXGW}, s{sRING}, s{sXGB}\ns_add_u32 s{sE1}, s{sAGW}, s{sW1024}\ns_add_u32 s{sE0}, s{sAGW}, s{sW256}')
    k(f's_add_u32 s{sL1}, s{sRING}, s{sXGO}\ns_add_u32 s{sL0}, s{sL1}, s{sW256}\ns_add_u32 s{sL1}, s{sL1}, s{sW1024}')
    k(f's_mov_b32 s{sEXP}, s{sEXN}\ns_add_u32 s{sEXN}, s{sEXN}, s{sXP}')
    for r in (sRING, sREARM):
        k(f's_add_u32 s{r}, s{r}, 5120\ns_cmp_eq_u32 s{r}, 15360\ns_cselect_b32 s{r}, 0, s{r}')
    k(f'v_and_b32 v{X}, 0xff, v{vL16}')
    k(f'v_bfe_u32 v{vT1}, v{vL16}, 5, 2\nv_lshlrev_b32 v{vM}, 8, v{vT1}\nv_and_b32 v{X+1}, 0x90, v{vL16}\nv_add_u32 v{vM}, v{vM}, v{X+1}')
    k(f'v_and_b32 v{X+1}, 64, v{vL16}\nv_xor_b32 v{X+1}, s{sT+7}, v{X+1}\nv_add_u32 v{vM}, v{vM}, v{X+1}')
    SETS = [LAND, [VA, VA+4, VT, VT+4], [QA, QA+4, KA, KA+4]][:NS]
    def rs_loads(LD):
        for i in range(4): k(f'buffer_load_dwordx4 {vr(LD[i],4)}, v{vRS}, {WSR}, s{sRS+i} offen sc1')
    if red:
        if role == '1': k(f's_cmp_ge_u32 s{sJ}, 8\ns_cbranch_scc1 {L("R_nored")}')
        if NS == 1: wait_tag(k, 'st1' if role == '0' else 'st0')
        for _ in range(OPT.get('rgap', 0)): k('s_nop 7')
        for n, LD in enumerate(SETS):
            if n:
                k(f's_sleep {OPT.get("ssl", 3)}')
            rs_loads(LD)
        st0 = k.state()
        k(f's_cmp_eq_u32 s{sTAG}, 0\ns_cbranch_scc1 {L("R_rs0")}')
        for tg in (1, 0):
            k.set_state(st0)
            k.label(L(f'R_rs{tg}'))
            op = 'v_or3_b32 {d}, {a}, {b}, {c}' if tg == 0 else 'v_bitop3_b32 {d}, {a}, {b}, {c} bitop3:0x80'
            o3 = lambda a, b, c: k(op.format(d=f'v{vT1}', a=f'v{a}', b=f'v{b}', c=f'v{c}'))
            for n, LD in enumerate(SETS):
                k(f'v_mfma_f32_16x16x32_bf16 {vr(RACC,4)}, {vr(LD[0],4)}, {vr(SEL,4)}, 0')
                k(f'v_mfma_f32_16x16x32_bf16 {vr(RACC,4)}, {vr(LD[1],4)}, {vr(SEL,4)}, {vr(RACC,4)}')
                o3(LD[0], LD[0]+2, LD[1])
                k(f'v_mfma_f32_16x16x32_bf16 {vr(RACC,4)}, {vr(LD[2],4)}, {vr(SEL,4)}, {vr(RACC,4)}')
                o3(vT1, LD[1]+2, LD[2])
                k(f'v_mfma_f32_16x16x32_bf16 {vr(RACC,4)}, {vr(LD[3],4)}, {vr(SEL,4)}, {vr(RACC,4)}')
                o3(vT1, LD[2]+2, LD[3]); o3(vT1, vT1, LD[3]+2)
                k(f'v_and_b32 v{vT1}, 1, v{vT1}')
                k(f'v_cmp_ne_u32 vcc, {tg}, v{vT1}')
                k(f's_cbranch_vccz {L("R_rsok")}')
                rs_loads(LD)
            k(f's_sub_u32 s{sBUD}, s{sBUD}, 1\ns_cbranch_scc1 {L("R_abort")}')
            k(f's_branch {L(f"R_rs{tg}")}')
        k.vm = []; k.hist = []
        k.label(L('R_rsok'))
        k('s_nop 2')
        D = RACC
        k(f'v_permlane32_swap_b32 v{D}, v{D+2}\nv_permlane32_swap_b32 v{D+1}, v{D+3}')
        k(f'v_add_f32 v{D}, v{D}, v{D+2}\nv_add_f32 v{D+1}, v{D+1}, v{D+3}')
        k(f'v_cvt_pk_bf16_f32 v{D}, v{D}, v{D+1}\nv_min_u32 v{D}, -2, v{D}')
        k(f'buffer_store_dword v{D}, v{vAGS}, {WSR}, s{sAGW} offen{S}')
        xs = f'buffer_store_dword v{D}, v{vAGS}, {WSR}, s{sXGW} offen sc1'
        k.vm[-1] = {'agst'}
        if OPT.get('st_l'): stamp(k, 5)
        if OPT.get('xfirst', 1) or role == '1': k(xs)
        if role == '0':
            k(f's_xor_b32 s{sTAG}, s{sTAG}, 1'); load_frag(k, FIRST[QK8])
        if OPT.get('ackw', 0) == 1 and role == '0': wait_tag(k, 'agst')
        if OPT.get('ackw', 0) == 2 and role == '0': k.wait(vm=0)
        if role == '1': k.label(L('R_nored'))
    if not (OPT.get('st_l') and red): stamp(k, 5)
    E2 = OPT.get('e2')
    if role != '0':
        k(f's_xor_b32 s{sTAG}, s{sTAG}, 1'); load_frag(k, FIRST[QK8])
    k.wait(lg=2)
    if OPT.get('steptrace') and role == '3':
        k(f's_memrealtime s[100:101]\ns_memtime s[94:95]'); k.force_wait(lg=0)
        k(f's_mov_b32 m0, s{sSTEP}\nv_writelane_b32 v254, s100, m0\nv_writelane_b32 v255, s94, m0\nv_writelane_b32 v253, s{sBUD}, m0')
    if OPT.get('t4'):
        k(f's_cmp_lg_u32 s{sSTEP}, 4\ns_cbranch_scc1 {L("R_nt4")}\ns_memtime s[94:95]'); k.force_wait(lg=0); k.label(L('R_nt4'))
    k('s_barrier')
    if OPT.get('st_c'): stamp(k, 2)
    if OPT.get('psl', 5): k(f's_sleep {OPT.get("psl", 5)}   ; poll back-off: the reduced lines reach L2 about now')
    gather(SLa, sE1, sE0, X)
    if E2:
        for _ in range(E2): k('s_nop 7')
        gather(QK8, sE1, sE0, X)
    if role == '0' and not OPT.get('xfirst', 1): k(xs)
    if LI == -3: gather(SLb, sL1, sL0, X)
    if LI == -4:
        k.wait(vm=k._need(k.vm, {f'v{SLa}'}))
        gather(SLb, sL1, sL0, X)
    put(SLa, 0)
    k.lg[-1] |= {'ew'}
    if LI == -5: gather(SLb, sL1, sL0, X)
    k.label(L('R_e'))
    for n, o in enumerate(chk8(SLa)): k(o)
    if NS >= 2: zero16(k, VA)
    if NS >= 3: zero16(k, QA)
    k(f's_cbranch_vccnz {L("R_slowe")}')
    k.label(L('R_eput'))
    if OPT.get('st_c'): stamp(k, 3)
    if LI == -2: gather(SLb, sL1, sL0, X)
    load_frag(k, FIRST[SLa])
    if STAMP:
        stamp(k, 6)
        k.wait(lg=0)
        k(f's_mov_b32 m0, s{sSTEP}')
        for i in range(7): k(f'v_writelane_b32 v{248+i}, s{72+2*i}, m0')
        k(f'v_writelane_b32 v255, s{sBUD}, m0\nv_writelane_b32 v247, s86, m0')
    wait_tag(k, 'ew')
    k(f's_branch {L("R_top")}')
    end_state = k.state()
    k.label(L('R_slowe')); k.vm = []; k.lg = []
    if E2:
        ny = (1 if role == '0' and not OPT.get('xfirst', 1) else 0) + (2 if LI in (-3, -4) else 0)
        k.force_wait(vm=ny)
        for o in chk8(QK8): k(o)
        k(f's_cbranch_vccnz {L("R_slowe2")}')
        put(QK8, 0)
        k(f's_branch {L("R_eput")}')
        k.label(L('R_slowe2')); k.vm = []; k.lg = []
    gather(SLa, sE1, sE0, X)
    k(f's_sub_u32 s{sBUD}, s{sBUD}, 1\ns_cbranch_scc1 {L("R_abort")}')
    k.force_wait(vm=0)
    put(SLa, 0)
    k(f's_branch {L("R_e")}')
    k.label(L('R_slowl')); k.vm = []; k.lg = []
    k(f'v_and_b32 v{vT1}, 0xff, v{vL16}')
    gather(SLb, sL1, sL0, vT1)
    k(f's_sub_u32 s{sBUD}, s{sBUD}, 1\ns_cbranch_scc1 {L("R_abort")}')
    for o in chk8(SLb): k(o)
    k(f's_cbranch_vccnz {L("R_slowl")}')
    put(SLb, 5120)
    k.force_wait(lg=0)
    k(f's_branch {L("R_contl")}')
    if role == '3' and OPT.get('kvflag'):
        k.label(L('R_slowk')); k.vm = []; k.lg = []
        k(f'v_and_b32 v{vT1}, 16, v{vL16}\nv_lshlrev_b32 v{vT1}, 7, v{vT1}')
        k(f'buffer_load_dword v{vAGS}, v{vT1}, {WSR}, s{sKVF} offen sc1')
        k(f's_sub_u32 s{sBUD}, s{sBUD}, 1\ns_cbranch_scc1 {L("R_abort")}')
        k(f'v_cmp_eq_u32 vcc, 0, v{vAGS}\ns_cbranch_vccnz {L("R_slowk")}\ns_branch {L("R_contk")}')
    if OPT.get('upto'):
        k.label(L('R_solo'))
        k(f'v_and_b32 v{X}, 0xff, v{vL16}\nv_mov_b32 v{vM}, v{vL16}')
        k(f's_add_u32 s{sSTEP}, s{sSTEP}, 1\ns_and_b32 s{sSTEP}, s{sSTEP}, 31\ns_sub_u32 s{sBUD}, s{sBUD}, 300\ns_cbranch_scc1 {L("R_abort")}')
        k.force_wait(lg=0)
        k(f's_branch {L("R_top")}')
    k.set_state(end_state)
    return stage

def emit_body(k, role, sc, tagL):
    d = K(); body(d, role, sc, tagL); st = d.state()
    d = K(); d.set_state(st); body(d, role, sc, tagL)
    assert d.state() == st, (d.state(), st)
    k.set_state(st); k.hist = []
    n0 = len(k.out)
    stage = body(k, role, sc, tagL)
    if OPT.get('novm'): k.out[n0:] = [l for l in k.out[n0:] if not l.strip().startswith('buffer_')]
    k.label(f'R_end_{tagL}')
    k.vm = []; k.lg = []
    for o in stage: k(o)
    k.force_wait(vm=0, lg=0)
    k('s_barrier')
    k(f'ds_read_b128 {vr(X,4)}, v{vT2} offset:{LDS_SMT}')
    k(f'buffer_store_dwordx4 {vr(X,4)}, v{vT2}, {WSR}, s{sEXN} offen sc1')
    k.force_wait(vm=0)
    k('s_barrier')
    if role == '3':
        k(f'v_mov_b32 v{vT1}, 64')
        k(f's_mov_b64 exec, 1\nbuffer_store_dword v{vT1}, off, {WSR}, s{sPRO} sc1\ns_mov_b64 exec, -1')
    k.label(f'R_abort_{tagL}')
    k.force_wait(vm=0, lg=0)
    k('s_branch R_exit')

def prologue(k):
    k(f's_load_dwordx2 s[8:9], s[0:1], {KA_WS}')
    k(f's_load_dwordx2 s[16:17], s[0:1], {KA_DBG}')
    k(f's_load_dwordx4 s[72:75], s[0:1], {KA_WQ}')
    k(f's_load_dwordx4 s[76:79], s[0:1], {KA_WV}')
    k(f's_load_dwordx2 s[80:81], s[0:1], {KA_MEM0}')
    k('v_lshrrev_b32 v20, 6, v0\nv_and_b32 v21, 63, v0')
    k(f'v_readfirstlane_b32 s{sW}, v20')
    k('s_mov_b32 s10, 0x10000000\ns_mov_b32 s11, 0x20000\ns_mov_b32 s18, 256\ns_mov_b32 s19, 0x20000\ns_mov_b32 s15, 0x20000')
    k('v_and_b32 v22, 15, v21\nv_lshrrev_b32 v23, 4, v21\nv_and_b32 v24, 1, v22\nv_and_b32 v27, 1, v23\nv_lshrrev_b32 v28, 1, v23')
    k(f'v_lshlrev_b32 v{vL16}, 4, v21')
    k('v_lshl_add_u32 v25, v23, 1, v24\nv_lshrrev_b32 v26, 3, v22\nv_lshlrev_b32 v26, 2, v26\nv_xor_b32 v25, v25, v26')
    k(f'v_lshrrev_b32 v26, 1, v22\nv_lshlrev_b32 v26, 7, v26\nv_lshl_add_u32 v{vAF}, v25, 4, v26')
    k(f's_mul_i32 s{sT}, s{sW}, {NLDS*2048}\ns_add_u32 s{sT}, s{sT}, {LDS_W}\nv_add_u32 v{vLW}, s{sT}, v{vL16}')
    k(f's_add_u32 s{sT}, s{sJ}, 32\ns_and_b32 s{sT+2}, s{sJ}, 4\ns_cmp_eq_u32 s{sW}, 0\ns_cselect_b32 s{sT}, s{sJ}, s{sT}\ns_cselect_b32 s{sT+2}, s{sT+2}, 0')
    k(f's_lshl_b32 s{sT+1}, s{sT}, 7\ns_mov_b32 s{sT+3}, {SL2}')
    k(f'v_lshrrev_b32 v25, 3, v21\nv_mul_lo_u32 v25, v25, s{sT+3}\nv_and_b32 v26, 7, v21\nv_lshl_add_u32 v25, v26, 4, v25\nv_add_u32 v{vRS}, s{sT+1}, v25')
    k(f's_cmp_ge_u32 s{sT}, 40\ns_cselect_b32 s{sT+1}, 0x20000000, s{sT+1}')
    k(f'v_xor_b32 v26, s{sT+2}, v26\nv_lshlrev_b32 v26, 4, v26\nv_lshl_add_u32 v26, v27, 3, v26\nv_lshl_add_u32 v26, v28, 2, v26\nv_add_u32 v{vAGS}, s{sT+1}, v26')
    k(f's_and_b32 s{sT+2}, s{sW}, 1\ns_lshl_b32 s{sT+2}, s{sT+2}, 1\nv_add_u32 v25, s{sT+2}, v28\nv_lshl_add_u32 v25, v25, 1, v24')
    k('v_lshrrev_b32 v26, 3, v22\nv_lshlrev_b32 v26, 2, v26\nv_xor_b32 v25, v25, v26\nv_lshlrev_b32 v25, 4, v25\nv_lshl_add_u32 v25, v27, 3, v25')
    k(f'v_lshrrev_b32 v26, 2, v22\nv_lshl_add_u32 v25, v26, 8, v25\ns_lshr_b32 s{sT+2}, s{sW}, 1\ns_lshl_b32 s{sT+2}, s{sT+2}, 10\nv_add_u32 v{vOW}, s{sT+2}, v25')
    k(f'v_lshrrev_b32 v25, 3, v22\nv_and_b32 v26, 7, v22\nv_lshl_add_u32 v25, v25, 4, v26\nv_lshlrev_b32 v25, 4, v25\nv_lshl_add_u32 v{vKV}, v23, 9, v25')
    k(f's_mov_b32 s{sMB0}, 0x33333333\ns_mov_b32 s{sMB0+1}, 0x33333333\ns_mov_b32 s{sMB1}, 0xcccccccc\ns_mov_b32 s{sMB1+1}, 0xcccccccc')
    for r in range(4):
        m = 0x03030303 << (2*r)
        k(f's_mov_b32 s{sMSEL+2*r}, {m:#x}\ns_mov_b32 s{sMSEL+2*r+1}, {m:#x}')
    k(f's_mov_b32 s{sMS0}, 0x00f0000f\ns_mov_b32 s{sMS0+1}, 0xf0000f00')
    k(f'v_mov_b32 v25, 0x4444\nv_mov_b32 v26, 0xeeee\nv_cndmask_b32 v{vIDX}, v25, v26, s[{sMB1}:{sMB1+1}]')
    k(f'v_lshlrev_b32 v25, 4, v24\nv_mov_b32 v26, 0x3f80\nv_lshlrev_b32 v{vPAT}, v25, v26')
    k(f'v_mov_b32 v{vZ1}, 0\nv_mov_b32 v{vZ2}, 0\nv_mov_b32 v{vPZ}, 0\nv_mov_b32 v{vPZ2}, 0')
    k(f's_lshl_b32 s{sW1024}, s{sW}, 10\ns_lshl_b32 s{sW4}, s{sW}, 2\ns_lshl_b32 s{sW512}, s{sW}, 9\ns_lshl_b32 s{sW256}, s{sW}, 8\ns_add_u32 s{sW256}, s{sW256}, 4096')
    k(f's_lshl_b32 s{sT+7}, s{sW}, 5\ns_add_u32 s{sT+7}, s{sT+7}, 4096\ns_mov_b32 s{sONE}, 0x3f803f80\ns_mov_b32 s{sONE+1}, 0x3f803f80')
    k(f'v_add_u32 v{vT2}, s{sW1024}, v{vL16}')
    k(f's_mov_b32 s{sC}, 0x3e0293ee')
    k(f's_mov_b32 s{sSTEP}, 0\ns_mov_b32 s{sTAG}, 1\ns_mov_b32 s{sBUD}, {OPT.get("budget", 300000)}')
    k(f's_lshl_b32 s{sKO}, s{sJ}, 14\ns_lshl_b32 s{sT}, s{sW}, 11\ns_add_u32 s{sKO}, s{sKO}, s{sT}\ns_add_u32 s{sVO}, s{sKO}, 8192')
    k(f's_mul_i32 s{sRS}, s{sG}, {32*SL2}\ns_add_u32 s{sRS}, s{sRS}, {WS_SLAB}\ns_mul_i32 s{sT}, s{sJ}, {SL2}\ns_add_u32 s{sT}, s{sT}, s{sRS}')
    k(f's_add_u32 s{sSL1}, s{sT}, s{sW1024}\ns_add_u32 s{sSL0}, s{sT}, s{sW256}')
    for i in range(1, 4): k(f's_add_u32 s{sRS+i}, s{sRS}, {i*8*SL2}')
    k(f's_lshl_b32 s{sT}, s{sG}, 15\ns_add_u32 s{sAGB}, s{sT}, {WS_AG}\ns_add_u32 s{sXGB}, s{sT}, {WS_XG}\ns_xor_b32 s{sXGO}, s{sXGB}, 0x8000')
    k(f's_mov_b32 s{sRING}, 0\ns_mov_b32 s{sREARM}, 5120')
    k(f's_lshl_b32 s{sEXN}, s{sJ}, 12\ns_add_u32 s{sEXN}, s{sEXN}, {WS_KVM}\ns_lshr_b32 s{sT}, s{sW}, 1\ns_cmp_eq_u32 s{sT}, s{sG}')
    k(f's_cselect_b32 s{sEXN}, s{sEXN}, 0x20000000\ns_cselect_b32 s{sXP}, 0x20000, 0\ns_mov_b32 s{sEXP}, 0x20000000')
    k(f's_lshl_b32 s83, s{sG}, 5\ns_add_u32 s83, s83, s{sJ}\ns_lshl_b32 s{sPRO}, s83, 7\ns_add_u32 s{sPRO}, s{sPRO}, {FL_PR}')
    k(f's_mul_i32 s{sL1}, s83, 5120\ns_add_u32 s{sL1}, s{sL1}, {WS_M0}\ns_mov_b32 s97, s{sL1}\ns_add_u32 s{sL0}, s{sL1}, s{sW256}\ns_add_u32 s{sL1}, s{sL1}, s{sW1024}')
    k.wait(lg=0)
    if OPT.get('touch'):
        k(f's_cmp_eq_u32 s{sW}, 1\ns_cselect_b32 s12, s74, s72\ns_cselect_b32 s13, s75, s73\ns_cmp_eq_u32 s{sW}, 2\ns_cselect_b32 s12, s76, s12\ns_cselect_b32 s13, s77, s13')
        k(f's_cmp_eq_u32 s{sW}, 3\ns_cselect_b32 s12, s78, s12\ns_cselect_b32 s13, s79, s13\ns_mov_b32 s14, 5242880')
        k(f'v_mul_u32_u24 v30, {OPT["touch"]}, v21\ns_lshl_b32 s89, s{sJ}, 8')
        k(f'buffer_load_dword v31, v30, {TR}, s89 offen'); k.vm[-1] = set()
    if OPT.get('tb') == 'a': k('s_memrealtime s[92:93]'); k.wait(lg=0); k('s_branch R_exit')
    if not OPT.get('preinit'):
        zero(k, 24, 4)
        k('v_mov_b32 v29, -1')
        k(f'buffer_store_dwordx4 v[24:27], v{vL16}, {WSR}, s{sSL1} offen sc1')
        k(f's_mov_b64 exec, 0xffff\nbuffer_store_dwordx4 v[24:27], v{vL16}, {WSR}, s{sSL0} offen sc1\ns_mov_b64 exec, -1')
        k(f's_cmp_ge_u32 s{sW}, 2\ns_cbranch_scc1 R_noinit')
        k(f'buffer_store_dword v29, v{vAGS}, {WSR}, s{sAGB} offen sc1')
        k(f'buffer_store_dword v29, v{vAGS}, {WSR}, s{sXGB} offen sc1')
        k.label('R_noinit')
    k(f's_cmp_lg_u32 s{sW}, 3\ns_cbranch_scc1 R_notw3\nv_mov_b32 v{vRS}, 0')
    k.label('R_notw3')
    k.force_wait(vm=0)
    k('s_barrier')
    k('s_getreg_b32 s82, hwreg(HW_REG_XCC_ID)\ns_and_b32 s82, s82, 0xf\ns_or_b32 s82, s82, 0x10\nv_mov_b32 v24, s82')
    k(f's_mov_b64 exec, 1\nbuffer_store_byte v24, off, {DBR}, s83 offset:{DBG_ID} sc1\ns_mov_b64 exec, -1')
    k('v_lshrrev_b32 v28, 2, v21\nv_and_b32 v29, 3, v21\nv_mul_u32_u24 v25, 1280, v28\nv_lshl_add_u32 v25, v29, 4, v25')
    k('v_lshrrev_b32 v30, 1, v23\nv_lshlrev_b32 v30, 4, v30\nv_bfe_u32 v31, v21, 3, 1\nv_lshl_add_u32 v30, v31, 3, v30')
    k('v_and_b32 v26, 1, v23\nv_lshl_add_u32 v30, v26, 2, v30\nv_bfe_u32 v27, v21, 2, 1\nv_add_u32 v30, v30, v27')
    k('v_lshl_add_u32 v31, v31, 1, v26\nv_lshl_add_u32 v31, v31, 2, v27')
    k(f's_mul_i32 s84, s{sW}, {NLDS*2048}\ns_add_u32 s84, s84, {LDS_W}')
    k('v_lshlrev_b32 v27, 6, v30\nv_lshl_add_u32 v27, v29, 3, v27\nv_add_u32 v27, s84, v27')
    k(f'v_lshrrev_b32 v26, 1, v29\nv_lshlrev_b32 v26, 1, v26\nv_add_u32 v26, s{sW4}, v26\nv_xor_b32 v26, v26, v31\nv_lshlrev_b32 v26, 4, v26')
    k('v_lshl_add_u32 v26, v30, 8, v26\nv_and_b32 v28, 1, v29\nv_lshl_add_u32 v26, v28, 3, v26')
    RING = LDS_W + NLDS*2048 - 16384
    k(f'v_add_u32 v16, {RING}, v26\nv_xor_b32 v17, 16, v16\nv_add_u32 v18, {2*NLDS*2048}, v16\nv_xor_b32 v19, 16, v18')
    k('v_and_b32 v28, 1, v23\nv_xor_b32 v28, v28, v22\nv_lshlrev_b32 v28, 4, v28\nv_lshl_add_u32 v28, v23, 13, v28')
    k('v_xor_b32 v29, 64, v28\nv_xor_b32 v30, 0x80, v28\nv_xor_b32 v31, 0xc0, v28')
    k(f's_lshl_b32 s85, s{sJ}, 8\ns_lshl_b32 s86, s{sW}, 17\ns_add_u32 s85, s85, s86')
    k(f's_mul_i32 s{sT}, s{sG}, {320*8192}\ns_sub_u32 s86, s85, s{sT}\ns_add_u32 s85, s85, s{sT}')
    k(f's_mul_i32 s87, s{sJ}, {128*1280}\ns_mul_i32 s{sT}, s{sG}, 640\ns_add_u32 s87, s87, s{sT}')
    k(f's_lshl_b32 s88, s{sW}, 7\ns_add_u32 s88, s88, s87\ns_lshl_b32 s{sT}, s{sW}, 5\ns_add_u32 s87, s87, s{sT}\ns_add_u32 s87, s87, 512')
    k(f's_lshl_b32 s{sT+1}, s{sW}, 12\ns_add_u32 s{sT+1}, s{sT+1}, {RING}')
    oblk = [(tp, k2) for k2 in range(2) for tp in (2, 0, 1)]
    blocks = [(m, p) for m in OPT.get('order', 'qkv') for p in range(10) if (m, p) != ('v', 0)] + [('v', 0)]
    NR = 4
    k(f'v_mov_b32 v20, v26\nv_xor_b32 v24, 16, v26\ns_lshl_b32 s{sT+2}, s{sW}, 12')
    def setsrd(p): k(f's_mov_b32 s12, s{p}\ns_mov_b32 s13, s{p+1}\ns_mov_b32 s14, 5242880')
    def oissue(b):
        tp, k2 = oblk[b]
        base, off = ('s88', tp*64) if tp < 2 else ('s87', 0)
        setsrd(78)
        for i in range(4):
            k(f's_add_u32 s89, {base}, {off + (64*k2 + 16*i)*1280}\ns_add_u32 m0, s84, {(b % 4)*4096 + i*1024}')
            k(f'buffer_load_dwordx4 v25, {TR}, s89 offen lds'); k.vm[-1] = {f'o{b}'}
    def issue(b):
        m, p = blocks[b]
        setsrd({'q': 72, 'k': 74, 'v': 76}[m])
        for i in range(4):
            k(f's_add_u32 s89, {"s85" if p < 5 else "s86"}, {(64*p + 4*i)*8192}\ns_add_u32 m0, s{sT+2 if b % NR == 4 else sT+1}, {(b % NR % 4)*NLDS*2048 + i*1024}')
            k(f'buffer_load_dwordx4 v{28+i}, {TR}, s89 offen{OPT.get("wbits", "")} lds'); k.vm[-1] = {f'dma{b}'}
    parked = []
    def fetch(f, te, addr, off0, rowb):
        src, i, r = PLAN[f]
        post = None
        if src == 'res': kind, base = r[0], int(r[2:r.index(':')])
        elif i >= 10:
            kind, base = 'v', 32 + 8*len(parked); parked.append((i, base))
        else:
            kind, base = 'v', 8*te + 240; post = (i, base)
        for t in range(0 if OPT.get('notr') else 4):
            k(f'ds_read_b64_tr_b16 {kind}[{base+2*t}:{base+2*t+1}], v{addr} offset:{off0 + (32*(t//2) + 2*(t % 2))*rowb}')
        return post
    def tx(n):
        if OPT.get('tb') == n: k('s_memrealtime s[92:93]'); k.wait(lg=0); k('s_branch R_exit')
    k('s_mov_b32 s12, s80\ns_mov_b32 s13, s81\ns_mov_b32 s14, 10240')
    k('v_lshrrev_b32 v48, 2, v22\nv_and_b32 v49, 1, v22\nv_lshl_add_u32 v48, v48, 1, v49\nv_mul_u32_u24 v48, 1280, v48')
    k(f'v_lshl_add_u32 v48, v23, 5, v48\nv_bfe_u32 v49, v22, 1, 1\nv_lshl_add_u32 v48, v49, 4, v48')
    k(f'v_add_u32 v49, s{sW1024}, v{vAF}')
    k(f's_mul_i32 s68, s{sG}, 640\ns_sub_u32 s69, 640, s68\ns_lshl_b32 s89, s{sW}, 7\ns_add_u32 s100, s68, s89\ns_add_u32 s101, s69, s89')
    k('v_and_b32 v50, 7, v21\nv_mul_u32_u24 v50, 1280, v50\nv_lshrrev_b32 v51, 3, v21\nv_lshl_add_u32 v50, v51, 4, v50')
    k(f'buffer_load_dwordx4 v[32:35], v48, {TR}, s100 offen')
    k(f'buffer_load_dwordx4 v[36:39], v48, {TR}, s68 offen offset:512')
    k(f'buffer_load_dwordx4 v[40:43], v48, {TR}, s101 offen')
    k(f'buffer_load_dwordx4 v[44:47], v50, {TR}, s69 offen offset:512')
    tx('s')
    for b in range(4): oissue(b)
    for b in range(NR - 1): issue(b)
    tx('i')
    if OPT.get('warm', 0):
        k('s_getpc_b64 s[90:91]')
        k.label('R_pc')
        k('s_add_u32 s90, s90, R_top_00-R_pc\ns_addc_u32 s91, s91, 0')
        k(f's_mul_i32 s{sT+3}, s{sW}, 5120\nv_lshlrev_b32 v96, 7, v21\nv_min_u32 v96, 0x1380, v96\nv_add_u32 v96, s{sT+3}, v96')
        k('global_load_dword v96, v96, s[90:91]'); k.vm[-1] = set()
    for b in range(6):
        tp, k2 = oblk[b]
        wait_tag(k, f'o{b}')
        tx(f'o{b}')
        for te in range(2):
            if ('o', 2*tp + te, k2) in PLAN: assert fetch(('o', 2*tp + te, k2), te, 27, (b % 4)*4096 + 32*te, 64) is None
        k.wait(lg=0)
        if b + 4 < 6: oissue(b + 4)
    k(f'ds_write_b128 v49, v[32:35]')
    k(f'ds_write_b128 v{vAF}, v[36:39] offset:4096')
    for c in range(8): k(f'v_min_u32 v{40+c}, -2, v{40+c}')
    k(f's_add_u32 s89, s97, 4096')
    k(f'buffer_store_dwordx4 v[40:43], v49, {WSR}, s97 offen')
    k(f'buffer_store_dwordx4 v[44:47], v{vL16}, {WSR}, s89 offen')
    for b in range(len(blocks)):
        if b == 16:
            k(f'buffer_load_ubyte v25, v21, {DBR}, 0 offen offset:{DBG_ID} sc1')
            if OPT.get('kvflag'):
                k(f's_lshr_b32 s{sKVB}, s{sJ}, 1\ns_lshl_b32 s{sKVB}, s{sKVB}, 7\ns_add_u32 s{sKVB}, s{sKVB}, {FL_KV}\ns_add_u32 s{sKVF}, s{sKVB}, 4')
                k(f'v_and_b32 v26, 1, v21\nv_lshlrev_b32 v27, 11, v26\nv_lshlrev_b32 v26, 6, v26')
                if OPT.get('one'): k(f'buffer_load_dword v26, v26, {DBR}, 0 offen offset:64 sc1')
        if b == 24 and OPT.get('kvflag'):
            assert k._need(k.vm, {'v26'}) is None
            k(f'buffer_load_dword v27, v27, {WSR}, s{sKVB} offen sc1')
        wait_tag(k, f'dma{b}')
        if OPT.get('tb') == b: k('s_memrealtime s[92:93]'); k.wait(lg=0); k('s_branch R_exit')
        k('s_barrier')
        if b + NR - 1 < len(blocks): issue(b + NR - 1)
        sl = b % NR
        post = [fetch((blocks[b][0], blocks[b][1], te), te, (20, 24)[te] if sl == 4 else 16 + te + 2*(sl//2), 0 if sl == 4 else (sl % 2)*NLDS*2048, 256) for te in range(2)]
        k.wait(lg=0)
        for pp in post:
            if pp: k(f'ds_write_b128 v{vLW}, {vr(pp[1],4)} offset:{pp[0]*2048}\nds_write_b128 v{vLW}, {vr(pp[1]+4,4)} offset:{pp[0]*2048+1024}')
    k('s_barrier')
    assert len(parked) == 8
    for i, base in parked:
        k(f'ds_write_b128 v{vLW}, {vr(base,4)} offset:{i*2048}\nds_write_b128 v{vLW}, {vr(base+4,4)} offset:{i*2048+1024}')
    k.force_wait(lg=0)

def enter(k, ready=None):
    if OPT.get('rdy'):
        k(f's_barrier\ns_cmp_lg_u32 s{sW}, 0\ns_cbranch_scc1 R_nrdy\nv_mov_b32 v29, 1\ns_mov_b64 exec, 1\nbuffer_atomic_add v29, off, {DBR}, 0 offset:96 sc1\ns_mov_b64 exec, -1')
        k.label('R_nrdy'); k.vm = []
    def again(L, load, test):
        k(f'{test}\ns_cbranch_vccz {L}_ok')
        k.label(L)
        k(load)
        k(f's_sub_u32 s{sBUD}, s{sBUD}, 1\ns_cbranch_scc1 R_exit')
        k(f'{test}\ns_cbranch_vccnz {L}')
        k.label(f'{L}_ok')
    again('R_hs', f'buffer_load_ubyte v25, v21, {DBR}, 0 offen offset:{DBG_ID} sc1', 'v_cmp_eq_u32 vcc, 0, v25')
    k('v_cmp_ne_u32 vcc, s82, v25')
    k(f's_cmp_eq_u32 s{sG}, 0\ns_cselect_b32 s83, vcc_lo, vcc_hi')
    if OPT.get('kvflag'):
        k('v_and_b32 v30, 1, v21\nv_lshlrev_b32 v28, 11, v30\nv_lshlrev_b32 v30, 6, v30')
        if OPT.get('one'):
            k('v_cmp_gt_u32 vcc, 0x60, v26\ns_cbranch_vccz R_cnt_ok\nv_mov_b32 v27, 0')
            again('R_cnt', f'buffer_load_dword v26, v30, {DBR}, 0 offen offset:64 sc1', 'v_cmp_gt_u32 vcc, 0x60, v26')
        again('R_kv0', f'buffer_load_dword v27, v28, {WSR}, s{sKVB} offen sc1', 'v_cmp_eq_u32 vcc, 0, v27')
    k(f'buffer_load_dwordx4 {vr(KT,4)}, v{vKV}, {WSR}, s{sKO} offen{NT()}')
    k(f'buffer_load_dwordx4 {vr(KT+4,4)}, v{vKV}, {WSR}, s{sKO} offen offset:128{NT()}')
    k(f's_add_u32 s{sKO}, s{sKO}, 0x80000')
    zero(k, QA, 24)
    k(f'v_and_b32 v{X}, 0xff, v{vL16}')
    k(f'v_bfe_u32 v{vT1}, v{vL16}, 5, 2\nv_lshlrev_b32 v{vM}, 8, v{vT1}\nv_and_b32 v{X+1}, 0x90, v{vL16}\nv_add_u32 v{vM}, v{vM}, v{X+1}')
    k(f'v_and_b32 v{X+1}, 64, v{vL16}\nv_xor_b32 v{X+1}, s{sT+7}, v{X+1}\nv_add_u32 v{vM}, v{vM}, v{X+1}')
    load_frag(k, FIRST[QK8]); load_frag(k, FIRST[SLa])
    if OPT.get('li', -2) <= -2:
        k(f'buffer_load_dwordx4 {vr(SLb,4)}, v{vL16}, {WSR}, s{sL1} offen sc1')
        k(f'buffer_load_dwordx4 {vr(SLb+4,4)}, v{X}, {WSR}, s{sL0} offen sc1')
    k.force_wait(lg=0)
    for w in range(3):
        k(f's_cmp_eq_u32 s{sW}, {w}\ns_cbranch_scc1 R_w{w}')
    for w in (3, 2, 1, 0):
        if w < 3: k.label(f'R_w{w}')
        k(f's_cmp_eq_u32 s83, 0\ns_cbranch_scc1 R_top_{w}0\ns_branch R_top_{w}1')
    for sc in (0, 1):
        for role in '0123':
            k.raw('.p2align 6')
            emit_body(k, role, sc, f'{role}{sc}')

def standalone(dbg=False, spread=False, timing=False, stamps=False, opt={}):
    global STAMP, OPT
    STAMP = stamps; OPT = opt
    from asmlib import kernel_desc
    k = K()
    name = 'rec_kernel'
    k.raw('; @launch grid=(256,1,1) block=(256,1,1) lds=163840')
    k.raw('.amdgcn_target "amdgcn-amd-amdhsa--gfx950"\n.text')
    k.raw(f'.globl {name}\n.p2align 8\n.type {name},@function\n{name}:')
    if spread:
        k(f's_cmp_ge_u32 s2, 64\ns_cbranch_scc1 R_done\ns_and_b32 s{sJ}, s2, 31\ns_lshr_b32 s{sG}, s2, 5')
    else:
        k(f's_cmp_ge_u32 s2, 256\ns_cbranch_scc1 R_done\ns_and_b32 s{sG}, s2, 7\ns_cmp_ge_u32 s{sG}, {opt.get("ng", 2)}\ns_cbranch_scc1 R_done\ns_lshr_b32 s{sJ}, s2, 3')
    if timing:
        k('s_memrealtime s[90:91]'); k.wait(lg=0)
    prologue(k)
    if timing:
        k('s_memrealtime s[92:93]\ns_memtime s[94:95]'); k.wait(lg=0)
    if opt.get('proonly'): k('s_branch R_exit')
    enter(k)
    k.label('R_exit')
    k(f's_lshl_b32 s96, s{sG}, 5\ns_add_u32 s96, s96, s{sJ}\ns_lshl_b32 s96, s96, 2\ns_add_u32 s96, s96, s{sW}')
    if stamps:
        k(f's_lshl_b32 s90, s96, 12\ns_add_u32 s90, s90, {WS_MEMH + 0x300000}')
        k(f'v_lshrrev_b32 v24, 2, v{vL16}')
        for i in range(8): k(f'buffer_store_dword v{248+i}, v24, {WSR}, s90 offen offset:{256*i}')
        k(f'buffer_store_dword v247, v24, {WSR}, s90 offen offset:2048')
        k.force_wait(vm=0)
    if timing:
        k('s_memrealtime s[64:65]\ns_memtime s[66:67]'); k.wait(lg=0)
        k(f's_sub_u32 s92, s92, s90\ns_sub_u32 s64, s64, s90\ns_sub_u32 s66, s66, s94')
        k(f'v_mov_b32 v24, s92\nv_mov_b32 v25, s64\nv_mov_b32 v26, s66\nv_mov_b32 v27, s{sBUD}')
        k(f's_lshl_b32 s90, s96, 4\ns_add_u32 s90, s90, {WS_MEMH + 0x100000}')
        k(f'buffer_store_dwordx4 v[24:27], off, {WSR}, s90')
        k.force_wait(vm=0)
    k.label('R_done')
    k('s_endpgm')
    k.raw('.section .rodata,"a"\n.p2align 6')
    k.raw(kernel_desc(name, vgpr=512, accum=256))
    return k.text(), name

if __name__ == '__main__':
    import asmlib
    t, name = standalone(False, False, True)
    open('rec2.s', 'w').write(t)
    asmlib.build(t, name, 'rec2.co')
    import cdna_launch
    print(cdna_launch.address_register_problem('rec2.co', name))
    d = K(); emit_body(d, '0', 0, 'x'); open('body_0.s', 'w').write(d.text()); print(d.stats, d.n)
```

```python
from kfw import K
from layout import *
import gen_ln
OPT = {}
DBR = 's[92:95]'
def vr(b, n): return f'v[{b}:{b+n-1}]'
WSR = 's[8:11]'
sXW, sIDX, sW = 3, 5, 4
def areg(rt, ks):
    i = (rt*40 + ks)*4
    return f'a[{i}:{i+3}]' if i < 256 else vr(192 + i - 256, 4)
vL16, vTR, vSRC, vS8, vS3, vT = 0, 1, 2, 3, 4, 5
BF = 8
ACC = 32
EP = 96
sU, sPU, sPS, sPO0, sPO1, sRB, sCG, sSLOT, sOUT, sPEND, sROWS, sBUD = 20, 21, 22, 23, 24, 25, 26, 27, 28, 29, 30, 40
SR0, SR1 = 's[12:15]', 's[16:19]'
PT = 72
def NUF(): return OPT.get('nu', 246)

def g1_prefetch_unit(k, L):
    k(f's_mov_b32 s{sPS}, 0')
    k(f's_cmp_ge_u32 s{sPU}, 192\ns_cbranch_scc1 {L}_f')
    k(f's_mov_b32 s12, s{PT}\ns_mov_b32 s13, s{PT+1}\ns_and_b32 s{sPO0}, s{sPU}, 63')
    k(f's_lshl_b32 s{sPO0}, s{sPO0}, 7\ns_lshl_b32 s64, s{sW}, 18\ns_add_u32 s{sPO0}, s{sPO0}, s64\ns_add_u32 s{sPO1}, s{sPO0}, 64')
    k(f's_mov_b32 s16, s12\ns_mov_b32 s17, s13\ns_mov_b32 s14, 5242880\ns_mov_b32 s18, 5242880\ns_mov_b32 s{sROWS}, {16*8192}\nv_mov_b32 v{vSRC}, v{vS8}')
    k(f's_branch {L}_d')
    k.label(f'{L}_f')
    k(f's_sub_u32 s{sPO0}, s{sPU}, 192\ns_lshl_b32 s{sPO0}, s{sPO0}, 6\ns_mul_i32 s64, s{sW}, {32*3456}\ns_add_u32 s{sPO0}, s{sPO0}, s64\ns_mov_b32 s{sPO1}, s{sPO0}')
    k(f's_mov_b32 s12, s{PT+8}\ns_mov_b32 s13, s{PT+9}\ns_mov_b32 s16, s{PT+10}\ns_mov_b32 s17, s{PT+11}')
    k(f's_cmp_lt_u32 s{sPU}, {NUF()}\ns_cselect_b32 s14, 2211840, 0\ns_mov_b32 s18, s14\ns_mov_b32 s{sROWS}, {16*3456}\nv_mov_b32 v{vSRC}, v{vS3}')
    k.label(f'{L}_d')

def g1_dma_ops(k):
    g = []
    for i in range(4):
        ct, hf = i % 2, i // 2
        o = [f's_add_u32 m0, s{sSLOT}, {ct*8192 + hf*1024}']
        if hf: o.append(f's_add_u32 s64, s{sPO0+ct}, s{sROWS}')
        o.append(f'buffer_load_dwordx4 v{vSRC}, {SR1 if ct else SR0}, s{64 if hf else sPO0+ct} offen lds')
        g.append(o)
    return g
def g1_advance(k, L):
    k(f's_lshl_b32 s64, s{sROWS}, 3\ns_add_u32 s{sPO0}, s{sPO0}, s64\ns_add_u32 s{sPO1}, s{sPO1}, s64')
    k(f's_add_u32 s{sSLOT}, s{sSLOT}, 16384\ns_and_b32 s{sSLOT}, s{sSLOT}, 0xffff')
    k(f's_add_u32 s{sPS}, s{sPS}, 1\ns_cmp_lt_u32 s{sPS}, 5\ns_cbranch_scc1 {L}_n')
    k(f's_add_u32 s{sPU}, s{sPU}, 24')
    g1_prefetch_unit(k, L)
    k.label(f'{L}_n')

def bread(buf, ks):
    return [f'ds_read_b64_tr_b16 {vr(BF + 8*buf + 4*ct + 2*t, 2)}, v{vTR} offset:{ct*8192 + (16*ks + 4*t)*64}' for ct in range(2) for t in range(2)]

def g1_unit(k, orient):
    tagL = f'G_{orient}'
    for ks in range(40):
        st, kk = ks // 8, ks % 8
        buf = ks % 2
        last = kk == 7
        nxt = bread(1 - buf, (kk + 1) % 8)
        dma = g1_dma_ops(k) if kk == 0 else None
        for q, (rt, ct) in enumerate(((0, 0), (1, 0), (0, 1), (1, 1))):
            acc = vr(ACC + 16*(2*rt + ct), 16)
            w, x = vr(BF + 8*buf + 4*ct, 4), areg(rt, ks)
            a, b = (x, w) if orient == 'V' else (w, x)
            k(f'v_mfma_f32_32x32x16_bf16 {acc}, {a}, {b}, {0 if ks == 0 else acc}')
            if last and q == 0:
                k.force_wait(vm=8, lg=0)
                k(f'v_add_u32 v{vTR}, 0x4000, v{vTR}')
                k('s_barrier')
                k(f'v_and_b32 v{vTR}, 0xffff, v{vTR}')
                k(nxt[0])
            else: k(nxt[q])
            if dma:
                for o in dma[q]:
                    if not (OPT.get('nodma') and o.startswith('buffer')): k(o)
                k.vm = []
            if kk == 1 and q == 0: g1_advance(k, f'{tagL}_a{st}')

def g1_store(k):
    for rt in range(2):
        if rt: k(f's_add_u32 s{sOUT}, s{sOUT}, s65')
        for ct in range(2):
            A = ACC + 16*(2*rt + ct); D = EP + 8*(2*rt + ct)
            for j in range(8): k(f'v_cvt_pk_bf16_f32 v{D+j}, v{A+2*j}, v{A+2*j+1}')
            for cc in range(2):
                k(f'buffer_store_dwordx4 {vr(D+4*cc,4)}, v{vL16}, {WSR}, s{sOUT} offen offset:{2048*ct + 1024*cc}{OPT.get("stb", " sc1")}')
    k.vm = []

def g1_ffn(k):
    k('s_mov_b32 s66, 0xc0135761\ns_mov_b32 s67, 0xbdd2d3e8')
    for rt in range(2):
        G = ACC + 32*rt; U = G + 16; T = EP + 16; D = EP + 8*rt
        k(f'v_mov_b32 v{vT}, s66')
        for h in range(2):
            R = range(8*h, 8*h + 8)
            for j in R: k(f'v_mul_f32 v{T+j%8}, v{G+j}, v{G+j}')
            for j in R: k(f'v_fma_f32 v{T+j%8}, v{T+j%8}, s67, v{vT}')
            for j in R: k(f'v_mul_f32 v{T+j%8}, v{T+j%8}, v{G+j}')
            for j in R: k(f'v_exp_f32 v{T+j%8}, v{T+j%8}')
            for j in R: k(f'v_mul_f32 v{G+j}, v{G+j}, v{U+j}')
            for j in R: k(f'v_add_f32 v{T+j%8}, 1.0, v{T+j%8}')
            for j in R: k(f'v_rcp_f32 v{T+j%8}, v{T+j%8}')
            for j in R: k(f'v_mul_f32 v{G+j}, v{G+j}, v{T+j%8}')
            for j in range(4): k(f'v_cvt_pk_bf16_f32 v{D+4*h+j}, v{G+8*h+2*j}, v{G+8*h+2*j+1}')
            k(f'buffer_store_dwordx4 {vr(D+4*h,4)}, v{vL16}, {WSR}, s{sOUT} offen offset:{1024*h} sc1')
        if rt == 0: k(f's_add_u32 s{sOUT}, s{sOUT}, {108*1024}')
    k.vm = []

def common(k):
    k(f's_load_dwordx2 s[8:9], s[0:1], {KA_WS}')
    k(f's_load_dwordx8 s[{PT}:{PT+7}], s[0:1], {KA_WQ}')
    k(f's_load_dwordx4 s[{PT+8}:{PT+11}], s[0:1], {KA_WG}')
    k(f's_load_dwordx2 s[{PT+12}:{PT+13}], s[0:1], {KA_WD}')
    k(f's_load_dwordx2 s[{PT+14}:{PT+15}], s[0:1], {KA_X}')
    k(f's_load_dwordx2 s[{PT+16}:{PT+17}], s[0:1], {KA_OUT}')
    k(f's_load_dwordx2 s[92:93], s[0:1], {KA_DBG}\ns_mov_b32 s94, 256\ns_mov_b32 s95, 0x20000')
    k(f'v_lshrrev_b32 v6, 6, v0\nv_and_b32 v7, 63, v0\nv_readfirstlane_b32 s{sW}, v6')
    k('s_mov_b32 s10, 0x10000000\ns_mov_b32 s11, 0x20000\ns_mov_b32 s15, 0x20000\ns_mov_b32 s19, 0x20000')
    k(f'v_lshlrev_b32 v{vL16}, 4, v7\ns_mov_b32 s{sBUD}, 2000000')
    k.wait(lg=0)

def g1(k):
    k(f's_and_b32 s{sRB}, s{sIDX}, 7\ns_lshr_b32 s{sCG}, s{sIDX}, 3\ns_lshl_b32 s64, s{sXW}, 2\ns_add_u32 s{sCG}, s{sCG}, s64')
    k(f'v_lshrrev_b32 v8, 2, v7\nv_and_b32 v9, 3, v7\nv_lshlrev_b32 v{vS8}, 13, v8\nv_lshl_add_u32 v{vS8}, v9, 4, v{vS8}')
    k(f'v_mul_u32_u24 v{vS3}, 3456, v8\nv_lshl_add_u32 v{vS3}, v9, 4, v{vS3}')
    k(f'v_lshrrev_b32 v8, 5, v7\nv_lshlrev_b32 v8, 9, v8\nv_bfe_u32 v10, v7, 2, 2\nv_lshl_add_u32 v8, v10, 6, v8\nv_bfe_u32 v10, v7, 4, 1\nv_lshl_add_u32 v8, v10, 5, v8\nv_lshl_add_u32 v{vTR}, v9, 3, v8')
    k(f's_add_u32 s{sU}, s{sCG}, 128\ns_mov_b32 s{sPU}, s{sU}\ns_lshl_b32 s{sSLOT}, s{sW}, 11\ns_mov_b32 s{sPEND}, 0')
    g1_prefetch_unit(k, 'G_p0')
    for n in range(3):
        for g in g1_dma_ops(k):
            for o in g: k(o)
        g1_advance(k, f'G_p{n+1}')
    k(f's_lshl_b32 s64, s{sRB}, 3\ns_lshl_b32 s65, s{sW}, 1\ns_add_u32 s{31}, s64, s65\ns_mul_i32 s64, s31, 40960\ns_add_u32 s64, s64, {WS_XN}')
    for i in range(80):
        if i and i % 4 == 0: k('s_add_u32 s64, s64, 4096')
        if i == 48: k.force_wait(vm=32)
        k(f'buffer_load_dwordx4 {areg(i//40, i%40)}, v{vL16}, {WSR}, s64 offen offset:{1024*(i%4)}{" sc1" if OPT.get("one") else ""}')
    k.force_wait(vm=0)
    k('s_barrier')
    if OPT.get('t1'): k('s_memrealtime s[92:93]'); k.wait(lg=0)
    for o in bread(0, 0): k(o)
    st0 = k.state()
    k.label('G_loop')
    g1_unit(k, 'T')
    assert k.state()[1] == st0[1]
    k(f's_cmp_ge_u32 s{sU}, 192\ns_cbranch_scc1 G_isf')
    k(f's_lshl_b32 s64, s{sU}, 12\ns_add_u32 s64, s64, {WS_Q - 128*4096}\ns_mov_b32 s65, 0x40000')
    k(f's_lshl_b32 s{sOUT}, s31, 18\ns_add_u32 s{sOUT}, s{sOUT}, s64')
    k.flush_hazards()
    if not OPT.get('nost'): g1_store(k)
    k('s_branch G_next')
    k.label('G_isf')
    k(f's_mul_i32 s{sOUT}, s31, {108*1024}\ns_lshl_b32 s64, s{sU}, 11\ns_add_u32 s{sOUT}, s{sOUT}, s64\ns_add_u32 s{sOUT}, s{sOUT}, {WS_H - 192*2048}')
    k('s_nop 7')
    g1_ffn(k)
    k.label('G_next')
    k(f's_add_u32 s{sU}, s{sU}, 24\ns_cmp_lt_u32 s{sU}, {NUF()}\ns_cbranch_scc1 G_loop')
    k.force_wait(vm=0, lg=0)
    k('s_barrier')
    k(f's_mul_i32 s64, s{sRB}, 24\ns_add_u32 s64, s64, s{sCG}\ns_lshl_b32 s64, s64, 2\ns_add_u32 s64, s64, {FL_G1}')
    k(f's_cmp_lg_u32 s{sW}, 0\ns_cbranch_scc1 G_end')
    k(f'v_mov_b32 v{vT}, 1\ns_mov_b64 exec, 1\nbuffer_store_dword v{vT}, off, {WSR}, s64 sc1\ns_mov_b64 exec, -1')
    k.label('G_end'); k.vm = []

sP, sPP = 20, 21
def wait_count(k, L, abort):
    k('v_and_b32 v30, 1, v7\nv_lshlrev_b32 v30, 6, v30')
    k.label(L)
    k(f'buffer_load_dword v31, v30, {DBR}, 0 offen offset:64 sc1')
    k(f's_sub_u32 s{sBUD}, s{sBUD}, 1\ns_cbranch_scc1 {abort}')
    k(f'v_cmp_ne_u32 vcc, 96, v31' if False else 'v_cmp_gt_u32 vcc, 0x60, v31')
    k(f's_cbranch_vccz {L}_ok\ns_sleep 4\ns_branch {L}')
    k.label(f'{L}_ok'); k.vm = []
def kv_dma(k):
    return [f's_mov_b32 m0, s{sSLOT}'] + [f'buffer_load_dwordx4 v{vL16}, {SR1}, s{sPO0} offen offset:{1024*i}{" sc1" if OPT.get("one") else ""} lds' for i in range(4)]
def kv_advance(k, L):
    k(f's_add_u32 s{sPO0}, s{sPO0}, 8192\ns_add_u32 s{sSLOT}, s{sSLOT}, 16384\ns_and_b32 s{sSLOT}, s{sSLOT}, 0xffff')
    k(f's_add_u32 s{sPS}, s{sPS}, 1\ns_cmp_lt_u32 s{sPS}, 5\ns_cbranch_scc1 {L}')
    k(f's_mov_b32 s{sPS}, 0\ns_add_u32 s{sPO0}, s{sPO0}, {11*40960}')
    k.label(L)
def xread(buf, kk): return [f'ds_read_b128 {vr(BF + 8*buf + 4*rt, 4)}, v{vTR} offset:{rt*8192 + kk*1024}' for rt in range(2)]
def kv_unit(k, orient):
    tagL = f'KV_{orient}'
    for ks in range(40):
        st, kk = ks // 8, ks % 8
        buf = ks % 2
        nxt = xread(1 - buf, (kk + 1) % 8)
        dma = kv_dma(k) if kk == 0 else None
        for q, (rt, ct) in enumerate(((0, 0), (0, 1), (1, 0), (1, 1))):
            acc = vr(ACC + 16*(2*rt + ct), 16)
            x, w = vr(BF + 8*buf + 4*rt, 4), areg(ct, ks)
            a, b = (x, w) if orient == 'V' else (w, x)
            k(f'v_mfma_f32_32x32x16_bf16 {acc}, {a}, {b}, {0 if ks == 0 else acc}')
            if kk == 7 and q == 0:
                k.force_wait(vm=8, lg=0)
                k(f'v_add_u32 v{vTR}, 0x4000, v{vTR}')
                k('s_barrier')
                k(f'v_and_b32 v{vTR}, 0xffff, v{vTR}')
            if q < 2: k(nxt[q])
            if dma:
                if q == 0: k(dma[0])
                k(dma[q + 1]); k.vm = []
            if kk == 1 and q == 0: kv_advance(k, f'{tagL}_a{st}')
            if ks == 17 and q == 0:
                k(f's_cmp_eq_u32 s{sPEND}, 0\ns_cbranch_scc1 {tagL}_np')
                k(f'v_mov_b32 v{vT}, 1\ns_mov_b64 exec, 1\nbuffer_store_dword v{vT}, off, {WSR}, s{sPEND} sc1\ns_mov_b64 exec, -1')
                k.label(f'{tagL}_np'); k.vm = []

def kv(k):
    k(f's_lshl_b32 s64, s{sXW}, 5\ns_add_u32 s64, s64, s{sIDX}\ns_mul_i32 s{sCG}, s64, 10923\ns_lshr_b32 s{sCG}, s{sCG}, 16\ns_mul_i32 s65, s{sCG}, 6\ns_sub_u32 s{sP}, s64, s65')
    ONE = OPT.get('one')
    if ONE:
        k(f's_mov_b32 s36, s64\ns_cmp_ge_u32 s36, 128\ns_cbranch_scc1 KV_noln0')
        gen_ln.ln_loads(k, 36, PT+14)
        k.label('KV_noln0')
        lnq = k.vm; k.vm = []
    k(f's_lshl_b32 s64, s{sP}, 1\ns_lshr_b32 s65, s{sW}, 1\ns_add_u32 s64, s64, s65\ns_mul_i32 s{sPO0}, s64, 40960\ns_and_b32 s65, s{sW}, 1\ns_lshl_b32 s65, s65, 12\ns_add_u32 s{sPO0}, s{sPO0}, s65')
    k(f's_lshl_b32 s{sSLOT}, s{sW}, 12\ns_mov_b32 s{sPS}, 0\ns_mov_b32 s{sPEND}, 0')
    k(f's_cmp_ge_u32 s{sCG}, 16\ns_cselect_b32 s12, s{PT+4}, s{PT+2}\ns_cselect_b32 s13, s{PT+5}, s{PT+3}\ns_mov_b32 s14, 5242880')
    k(f's_and_b32 s64, s{sCG}, 15\ns_lshl_b32 s64, s64, 9\ns_lshl_b32 s65, s{sW}, 7\ns_add_u32 s32, s64, s65\ns_mul_i32 s33, s{sW}, 24576\ns_add_u32 s33, s33, 65536')
    k(f'v_lshrrev_b32 v8, 3, v7\nv_and_b32 v9, 7, v7\nv_lshlrev_b32 v{vS8}, 13, v8\nv_lshl_add_u32 v{vS8}, v9, 4, v{vS8}')
    k(f'v_lshrrev_b32 v8, 5, v7\nv_lshlrev_b32 v8, 10, v8\nv_bfe_u32 v10, v7, 2, 2\nv_lshl_add_u32 v8, v10, 7, v8\nv_bfe_u32 v10, v7, 4, 1\nv_lshl_add_u32 v8, v10, 5, v8')
    k(f'v_and_b32 v9, 3, v7\nv_lshl_add_u32 v8, v9, 3, v8\nv_add_u32 v{vS3}, s33, v8')
    def issue(b):
        for i in range(8):
            k(f's_add_u32 m0, s33, {(b % 3)*8192 + i*1024}\ns_add_u32 s64, s32, {(64*b + 8*i)*8192}')
            k(f'buffer_load_dwordx4 v{vS8}, {SR0}, s64 offen lds'); k.vm[-1] = {f'w{b}'}
    for b in range(3): issue(b)
    if ONE:
        wq = k.vm
        k(f's_lshl_b32 s64, s36, 9\ns_add_u32 s64, s64, {WS_FLG}\nv_mov_b64 v[72:73], 0\nv_mov_b64 v[74:75], 0')
        k(f's_cmp_lg_u32 s{sW}, 3\ns_cbranch_scc1 KV_noz\ns_mov_b32 exec_hi, 0')
        k(f'buffer_store_dwordx4 v[72:75], v{vL16}, {WSR}, s64 offen sc1\ns_mov_b32 exec_hi, -1')
        k.label('KV_noz')
        k(f's_cmp_ge_u32 s36, 128\ns_cbranch_scc1 KV_noln1')
        k.force_wait(vm=24); k.vm = []
        gen_ln.ln_compute(k)
        k.label('KV_noln1')
        k.force_wait(vm=0)
        k('s_barrier')
        k(f's_cmp_lg_u32 s{sW}, 0\ns_cbranch_scc1 KV_noc\ns_and_b32 s64, s36, 1\ns_lshl_b32 s64, s64, 6\nv_mov_b32 v{vT}, 1')
        k(f's_mov_b64 exec, 1\nbuffer_atomic_add v{vT}, off, {DBR}, s64 offset:64 sc1\ns_mov_b64 exec, -1')
        k.label('KV_noc'); k.vm = []
    def stream_start():
        if ONE: wait_count(k, 'KV_cnt', 'M_fin')
        k(f's_add_u32 s16, s8, {WS_XN}\ns_addc_u32 s17, s9, 0\ns_mov_b32 s18, 2621440')
        for n in range(3):
            for o in kv_dma(k): k(o)
            kv_advance(k, f'KV_p{n}')
    if not ONE: stream_start()
    for b in range(10):
        if ONE and b == OPT.get('syncb', 4): stream_start()
        n_ = k._need(k.vm, {f'w{b}'})
        if n_ is not None: k.wait(vm=n_)
        for kq in range(4):
            for ct in range(2):
                r = areg(ct, 4*b + kq); kind, base = r[0], int(r[2:r.index(':')])
                for t in range(2):
                    k(f'ds_read_b64_tr_b16 {kind}[{base+2*t}:{base+2*t+1}], v{vS3} offset:{(b % 3)*8192 + (16*kq + 4*t)*128 + 64*ct}')
            if kq == 1: k.wait(lg=0)
        k.wait(lg=0)
        if b + 3 < 10: issue(b + 3)
    k(f'v_mov_b32 v{vTR}, v{vL16}')
    k(f's_and_b32 s64, s{sCG}, 15\ns_lshl_b32 s64, s64, 15\ns_lshr_b32 s65, s{sW}, 1\ns_lshl_b32 s65, s65, 14\ns_add_u32 s64, s64, s65\ns_and_b32 s65, s{sW}, 1\ns_lshl_b32 s65, s65, 12\ns_add_u32 s64, s64, s65')
    k(f's_lshr_b32 s65, s{sCG}, 4\ns_lshl_b32 s65, s65, 13\ns_add_u32 s34, s64, s65\ns_lshl_b32 s35, s{sCG}, 7\ns_add_u32 s35, s35, {FL_KV}')
    k.force_wait(vm=0)
    k('s_barrier')
    if OPT.get('t1'): k('s_memrealtime s[92:93]'); k.wait(lg=0)
    for o in xread(0, 0): k(o)
    st0 = k.state()
    k(f's_cmp_ge_u32 s{sCG}, 16\ns_cbranch_scc1 KV_loopV')
    for orient in 'TV':
        k.set_state(st0); k.hist = []
        k.label(f'KV_loop{orient}')
        kv_unit(k, orient)
        assert k.state()[1] == st0[1]
        k(f's_lshl_b32 s{sOUT}, s{sP}, 20\ns_add_u32 s{sOUT}, s{sOUT}, s34\ns_mov_b32 s65, 0x80000')
        k(f's_lshl_b32 s{sPEND}, s{sP}, 2\ns_add_u32 s{sPEND}, s{sPEND}, s35\ns_cmp_eq_u32 s{sW}, 0\ns_cselect_b32 s{sPEND}, s{sPEND}, 0')
        k.flush_hazards()
        g1_store(k)
        if OPT.get('pause'):
            k(f's_cmp_ge_u32 s{sP}, 6\ns_cbranch_scc1 KV_np{orient}')
            k.force_wait(vm=0)
            k(f's_barrier\ns_cmp_eq_u32 s{sPEND}, 0\ns_cbranch_scc1 KV_nf{orient}')
            k(f'v_mov_b32 v{vT}, 1\ns_mov_b64 exec, 1\nbuffer_store_dword v{vT}, off, {WSR}, s{sPEND} sc1\ns_mov_b64 exec, -1')
            k.label(f'KV_nf{orient}')
            k(f'buffer_load_dword v{vT}, off, {DBR}, 0 offset:96 sc1')
            k(f's_sub_u32 s{sBUD}, s{sBUD}, 1\ns_cbranch_scc1 M_fin')
            k(f'v_cmp_gt_u32 vcc, 64, v{vT}\ns_cbranch_vccz KV_np{orient}\ns_sleep 8\ns_branch KV_nf{orient}')
            k.label(f'KV_np{orient}'); k.vm = []
        k(f's_add_u32 s{sP}, s{sP}, 6\ns_cmp_lt_u32 s{sP}, 32\ns_cbranch_scc1 KV_loop{orient}')
        if orient == 'T': k('s_branch KV_fin')
    k.label('KV_fin')
    k.force_wait(vm=0, lg=0)
    k('s_barrier')
    k(f's_cmp_eq_u32 s{sPEND}, 0\ns_cbranch_scc1 KV_end')
    k(f'v_mov_b32 v{vT}, 1\ns_mov_b64 exec, 1\nbuffer_store_dword v{vT}, off, {WSR}, s{sPEND} sc1\ns_mov_b64 exec, -1')
    k.label('KV_end'); k.vm = []

def poll(k, L, vaddr, soff, cond, abort, nreg=1, tmp=vT, far=None):
    k.label(L)
    for i in range(nreg): k(f'buffer_load_dword v{tmp+i}, v{vaddr}, {WSR}, {soff} offen offset:{256*i} sc1')
    k(f's_sub_u32 s{sBUD}, s{sBUD}, 1\ns_cbranch_scc1 {abort}')
    for i in range(1, nreg): k(f'v_min_u32 v{tmp}, v{tmp}, v{tmp+i}')
    k(f'{cond}, v{tmp}')
    k(f's_cbranch_vccz {L}_ok')
    if far:
        k(f'{far}, v{tmp}\ns_cbranch_vccz {L}_n\ns_sleep {OPT.get("lsl", 24)}')
        k.label(f'{L}_n')
    k(f's_sleep {OPT.get("wsl", 2)}\ns_branch {L}')
    k.label(f'{L}_ok')

def wait_g1(k, L, abort):
    k(f'v_lshlrev_b32 v6, 2, v7\ns_mov_b32 s64, {FL_G1}')
    poll(k, L, 6, 's64', 'v_cmp_eq_u32 vcc, 0', abort, nreg=3, tmp=8)

def attn(k, abort):
    Q, KK, V, KM, VM, S, SM, P, PM = 8, 40, 72, 104, 136, 152, 168, 184, 192
    O = 8
    vKM, vVM, vPR, vM, vT1, vT2 = 1, 2, 3, 4, 5, 6
    sS, sH, sA, sC, sQ, sK, sX, sMK = 20, 21, 22, 23, 24, 25, 26, 70
    wait_g1(k, 'A_g1', abort)
    k(f's_sub_u32 s{sA}, s{sIDX}, 20\ns_lshl_b32 s{sH}, s{sA}, 2\ns_add_u32 s{sH}, s{sH}, s{sW}\ns_mov_b32 s{sS}, s{sXW}\ns_mov_b32 s{sC}, 0x3e0293ee')
    k(f'v_lshrrev_b32 v8, 5, v7\nv_and_b32 v9, 7, v7\nv_lshlrev_b32 v9, 4, v9\nv_lshl_add_u32 v{vKM}, v8, 7, v9')
    k(f'v_and_b32 v9, 31, v7\nv_lshlrev_b32 v10, 2, v9\nv_lshl_add_u32 v{vVM}, v8, 8, v10')
    k(f'v_lshlrev_b32 v10, 2, v8\nv_sub_u32 v10, v9, v10')
    for r in range(16): k(f'v_cmp_le_i32 s[{sMK+2*r}:{sMK+2*r+1}], {8*(r//4) + r % 4}, v10')
    k(f'v_and_b32 v9, 1, v7\nv_lshlrev_b32 v9, 12, v9\ns_lshl_b32 s64, s{sH}, 7\nv_add_u32 v{vPR}, s64, v9')
    for w in range(4): k(f'v_mov_b64 {vr(VM+4*w+2,2)}, 0')
    k(f'v_mov_b64 {vr(PM+2,2)}, 0')
    k.label('A_loop')
    k(f's_lshl_b32 s64, s{sS}, 5\ns_add_u32 s64, s64, s{sH}\ns_lshl_b32 s{sK}, s64, 14\ns_lshl_b32 s{sQ}, s64, 13\ns_lshl_b32 s{sX}, s64, 12\ns_add_u32 s{sX}, s{sX}, {WS_KVM}')
    k(f's_add_u32 s65, s{sQ}, {WS_Q}\ns_add_u32 s66, s65, 4096\ns_add_u32 s67, s{sK}, 4096\ns_add_u32 s68, s{sK}, 8192\ns_add_u32 s69, s{sK}, 12288')
    for i in range(8):
        k(f'buffer_load_dwordx4 {vr(Q+4*i,4)}, v{vL16}, {WSR}, s{65 + i//4} offen offset:{1024*(i%4)} sc1')
        k(f'buffer_load_dwordx4 {vr(KK+4*i,4)}, v{vL16}, {WSR}, s{sK if i < 4 else 67} offen offset:{1024*(i%4)} sc1')
    for i in range(8): k(f'buffer_load_dwordx4 {vr(V+4*i,4)}, v{vL16}, {WSR}, s{68 + i//4} offen offset:{1024*(i%4)} sc1')
    for i in range(8): k(f'v_mfma_f32_32x32x16_bf16 {vr(S,16)}, {vr(KK+4*i,4)}, {vr(Q+4*i,4)}, {0 if i == 0 else vr(S,16)}')
    k(f'v_mov_b32 v{vT2}, 0xff800000')
    for r in range(16): k(f'v_cndmask_b32 v{S+r}, v{vT2}, v{S+r}, s[{sMK+2*r}:{sMK+2*r+1}]')
    k(f'v_max3_f32 v{vM}, v{S}, v{S+1}, v{S+2}')
    for r in range(3, 15, 2): k(f'v_max3_f32 v{vM}, v{vM}, v{S+r}, v{S+r+1}')
    k(f'v_max_f32 v{vM}, v{vM}, v{S+15}')
    k(f's_mov_b32 s64, {FL_PR}')
    k.wait(vm=0)
    poll(k, 'A_pr', vPR, 's64', f'v_cmp_ge_u32 vcc, s{sS}', abort, tmp=vT1, far=f'v_cmp_gt_u32 vcc, s{sS}' if OPT.get('lsl', 24) else None)
    for i in range(8): k(f'buffer_load_dwordx4 {vr(KM+4*i,4)}, v{vKM}, {WSR}, s{sX} offen offset:{256*i} sc1')
    for w in range(4):
        for g in range(2): k(f'buffer_load_dword v{VM+4*w+g}, v{vVM}, {WSR}, s{sX} offen offset:{2048 + 512*w + 128*g} sc1')
    for i in range(8): k(f'v_mfma_f32_32x32x16_bf16 {vr(SM,16)}, {vr(KM+4*i,4)}, {vr(Q+4*i,4)}, {0 if i == 0 else vr(SM,16)}')
    k(f'v_max3_f32 v{vM}, v{vM}, v{SM}, v{SM+1}\nv_max3_f32 v{vM}, v{vM}, v{SM+2}, v{SM+3}')
    k(f'v_mov_b32 v{vT1}, v{vM}\nv_permlane32_swap_b32 v{vM}, v{vT1}\nv_max_f32 v{vM}, v{vM}, v{vT1}\nv_mul_f32 v{vM}, s{sC}, v{vM}')
    E = [SM+i for i in range(4)] + [S+i for i in range(16)]
    for r in E: k(f'v_fma_f32 v{r}, s{sC}, v{r}, -v{vM}')
    for r in E: k(f'v_exp_f32 v{r}, v{r}')
    for j in range(2): k(f'v_cvt_pk_bf16_f32 v{PM+j}, v{SM+2*j}, v{SM+2*j+1}')
    for j in range(8): k(f'v_cvt_pk_bf16_f32 v{P+j}, v{S+2*j}, v{S+2*j+1}')
    adds = [f'v_add_f32 v{vM}, v{E[0]}, v{E[1]}'] + [f'v_add_f32 v{vM}, v{vM}, v{r}' for r in E[2:]]
    adds += [f'v_mov_b32 v{vT1}, v{vM}', 's_nop 1', f'v_permlane32_swap_b32 v{vM}, v{vT1}', f'v_add_f32 v{vM}, v{vM}, v{vT1}', f'v_rcp_f32 v{vM}, v{vM}']
    for w in range(4):
        for (a, b, first) in ((VM+4*w, PM, True), (V+8*w, P, False), (V+8*w+4, P+4, False)):
            k(f'v_mfma_f32_32x32x16_bf16 {vr(O+16*w,16)}, {vr(a,4)}, {vr(b,4)}, {0 if first else vr(O+16*w,16)}')
            for _ in range(5):
                if adds: k(adds.pop(0))
    k(f's_add_u32 s65, s{sQ}, {WS_O}\ns_add_u32 s66, s65, 4096')
    for w in range(4):
        A = O + 16*w
        for r in range(16): k(f'v_mul_f32 v{A+r}, v{A+r}, v{vM}')
        for j in range(8): k(f'v_cvt_pk_bf16_f32 v{A+j}, v{A+2*j}, v{A+2*j+1}')
        for cc in range(2): k(f'buffer_store_dwordx4 {vr(A+4*cc,4)}, v{vL16}, {WSR}, s{65 + w//2} offen offset:{2048*(w%2) + 1024*cc} sc1')
    k(f's_lshl_b32 s64, s{sS}, 3\ns_add_u32 s64, s64, s{sA}\ns_lshl_b32 s64, s64, 7\ns_add_u32 s64, s64, {FL_O}\nv_mov_b32 v{vT1}, 1')
    k.force_wait(vm=0)
    k('s_barrier')
    k(f's_cmp_lg_u32 s{sW}, 0\ns_cbranch_scc1 A_nf')
    k(f's_mov_b64 exec, 1\nbuffer_store_dword v{vT1}, off, {WSR}, s64 sc1\ns_mov_b64 exec, -1')
    k.label('A_nf'); k.vm = [set()]
    k(f's_add_u32 s{sS}, s{sS}, 6\ns_cmp_lt_u32 s{sS}, 64\ns_cbranch_scc1 A_loop')

def wout(k, abort):
    WF, AG, AO, LD, XR, GV, TT = 8, 32, 48, 64, 20, 22, 192
    vSR, vTW, vX, vFO, vRW, vRR = 1, 2, 3, 4, 5, 6
    sS, sCT = 20, 21
    RED_G, RED_O = 110592, 126976
    XR_, OR_ = 's[16:19]', 's[24:27]'
    k(f'v_lshrrev_b32 v8, 2, v7\nv_and_b32 v9, 3, v7\nv_mul_u32_u24 v{vSR}, 1280, v8\nv_lshl_add_u32 v{vSR}, v9, 4, v{vSR}')
    k(f'v_lshrrev_b32 v8, 5, v7\nv_lshlrev_b32 v10, 8, v8\nv_bfe_u32 v11, v7, 2, 2\nv_lshl_add_u32 v10, v11, 6, v10\nv_bfe_u32 v11, v7, 4, 1\nv_lshl_add_u32 v10, v11, 5, v10\nv_lshl_add_u32 v10, v9, 3, v10')
    k(f's_lshl_b32 s33, s{sW}, 15\nv_add_u32 v{vTW}, s33, v10')
    k(f's_mov_b32 s12, s{PT+6}\ns_mov_b32 s13, s{PT+7}\ns_mov_b32 s14, 5242880\ns_lshl_b32 s{sCT}, s{sIDX}, 6\ns_mul_i32 s32, s{sW}, {1024*1280}\ns_add_u32 s32, s32, s{sCT}')
    def issue(b):
        for i in range(8):
            k(f's_add_u32 m0, s33, {(b % 4)*8192 + i*1024}\ns_add_u32 s64, s32, {(128*b + 16*i)*1280}')
            k(f'buffer_load_dwordx4 v{vSR}, {SR0}, s64 offen lds'); k.vm[-1] = {f'w{b}'}
    for b in range(4): issue(b)
    for b in range(8):
        k.wait(vm=k._need(k.vm, {f'w{b}'}))
        for kk in range(8):
            for t in range(2):
                r = 4*(8*b + kk) + 2*t
                k(f'ds_read_b64_tr_b16 a[{r}:{r+1}], v{vTW} offset:{(b % 4)*8192 + (16*kk + 8*t)*64}')
            if kk == 3: k.wait(lg=0)
        k.wait(lg=0)
        if b + 4 < 8: issue(b + 4)
    k('s_barrier')
    k(f's_mov_b32 s12, s{PT+12}\ns_mov_b32 s13, s{PT+13}\ns_mov_b32 s14, 2211840\ns_mul_i32 s33, s{sW}, 27648\ns_mul_i32 s32, s{sW}, {432*1280}\ns_add_u32 s32, s32, s{sCT}')
    for i in range(27):
        k(f's_add_u32 m0, s33, {i*1024}\ns_add_u32 s64, s32, {16*i*1280}')
        k(f'buffer_load_dwordx4 v{vSR}, {SR0}, s64 offen lds')
    k(f'v_add_u32 v{vTW}, s33, v10')
    k(f's_mov_b32 s16, s{PT+14}\ns_mov_b32 s17, s{PT+15}\ns_mov_b32 s18, 2621440\ns_mov_b32 s24, s{PT+16}\ns_mov_b32 s25, s{PT+17}\ns_mov_b32 s26, 2621440\ns_mov_b32 s27, 0x20000')
    k(f'v_and_b32 v9, 31, v7\nv_mul_u32_u24 v9, 1280, v9\nv_lshl_add_u32 v9, v8, 3, v9\ns_lshl_b32 s64, s{sW}, 4\ns_add_u32 s64, s64, s{sCT}\nv_add_u32 v{vX}, s64, v9')
    k(f'v_and_b32 v9, 7, v7\nv_lshlrev_b32 v{vFO}, 7, v9')
    k.force_wait(vm=0)
    wait_g1(k, 'W_g1', abort)
    k(f's_lshl_b32 s64, s{sW}, 12\nv_add_u32 v{vRW}, s64, v{vL16}\ns_lshl_b32 s64, s{sW}, 10\nv_add_u32 v{vRR}, s64, v{vL16}')
    k(f'v_add_u32 v{vRW}, {RED_G}, v{vRW}\nv_add_u32 v{vRR}, {RED_G}, v{vRR}')
    k(f's_mov_b32 s{sS}, s{sXW}\ns_mov_b32 s22, 0xbfb8aa3b')
    def reduce(acc, off, D):
        for b in range(4): k(f'ds_write_b128 v{vRW}, {vr(acc+4*b,4)} offset:{off + 1024*b}')
        k.wait(lg=0)
        k('s_barrier')
        for w in range(4): k(f'ds_read_b128 {vr(TT+4*w,4)}, v{vRR} offset:{off + 4096*w}')
        for i in range(4): k(f'v_add_f32 v{TT+i}, v{TT+i}, v{TT+4+i}')
        for i in range(4): k(f'v_add_f32 v{TT+8+i}, v{TT+8+i}, v{TT+12+i}')
        for i in range(4): k(f'v_add_f32 v{D+i}, v{TT+i}, v{TT+8+i}')
    def rnd(D):
        k(f'v_cvt_pk_bf16_f32 v{TT}, v{D}, v{D+1}\nv_cvt_pk_bf16_f32 v{TT+1}, v{D+2}, v{D+3}')
        for i in range(2): k(f'v_lshlrev_b32 v{D+2*i}, 16, v{TT+i}\nv_and_b32 v{D+2*i+1}, 0xffff0000, v{TT+i}')
    k.label('W_loop')
    k(f's_mul_i32 s64, s{sS}, 110592\ns_add_u32 s64, s64, s33\ns_add_u32 s64, s64, {WS_H}\ns_mul_i32 s23, s{sS}, 40960')
    for i in range(27):
        if i and i % 4 == 0: k('s_add_u32 s64, s64, 4096')
        k(f'buffer_load_dwordx4 {vr(LD+4*i,4)}, v{vL16}, {WSR}, s64 offen offset:{1024*(i%4)} sc1')
    k(f'buffer_load_dwordx2 {vr(XR,2)}, v{vX}, {XR_}, s23 offen')
    wrd = lambda i: [f'ds_read_b64_tr_b16 {vr(WF + 4*(i%3) + 2*t, 2)}, v{vTW} offset:{(16*i + 8*t)*64}' for t in range(2)]
    for i in range(2):
        for o in wrd(i): k(o)
    for i in range(27):
        if i + 2 < 27:
            for o in wrd(i + 2): k(o)
        k(f'v_mfma_f32_32x32x16_bf16 {vr(AG,16)}, {vr(WF+4*(i%3),4)}, {vr(LD+4*i,4)}, {0 if i == 0 else vr(AG,16)}')
    reduce(AG, 0, GV)
    rnd(GV)
    for i in range(4): k(f'v_mul_f32 v{TT+4+i}, s22, v{GV+i}')
    for i in range(4): k(f'v_exp_f32 v{TT+4+i}, v{TT+4+i}')
    for i in range(4): k(f'v_add_f32 v{TT+4+i}, 1.0, v{TT+4+i}')
    for i in range(4): k(f'v_rcp_f32 v{TT+4+i}, v{TT+4+i}')
    for i in range(4): k(f'v_mul_f32 v{GV+i}, v{GV+i}, v{TT+4+i}')
    rnd(GV)
    k(f's_lshl_b32 s64, s{sS}, 10\ns_add_u32 s64, s64, {FL_O}')
    k.wait(vm=0)
    poll(k, 'W_o', vFO, 's64', 'v_cmp_eq_u32 vcc, 0', abort, tmp=TT)
    k(f's_lshl_b32 s64, s{sS}, 18\ns_lshl_b32 s65, s{sW}, 16\ns_add_u32 s64, s64, s65\ns_add_u32 s64, s64, {WS_O}')
    def old(i):
        if i and i % 4 == 0: k('s_add_u32 s64, s64, 4096')
        k(f'buffer_load_dwordx4 {vr(LD+4*(i%32),4)}, v{vL16}, {WSR}, s64 offen offset:{1024*(i%4)} sc1')
    for i in range(32): old(i)
    for i in range(64):
        k(f'v_mfma_f32_32x32x16_bf16 {vr(AO,16)}, a[{4*i}:{4*i+3}], {vr(LD+4*(i%32),4)}, {0 if i == 0 else vr(AO,16)}')
        if i < 32: old(i + 32)
    reduce(AO, RED_O - RED_G, AO)
    rnd(AO)
    for i in range(4): k(f'v_mul_f32 v{AO+i}, v{AO+i}, v{GV+i}')
    rnd(AO)
    for i in range(2): k(f'v_lshlrev_b32 v{TT+4+2*i}, 16, v{XR+i}\nv_and_b32 v{TT+5+2*i}, 0xffff0000, v{XR+i}')
    for i in range(4): k(f'v_add_f32 v{AO+i}, v{AO+i}, v{TT+4+i}')
    k(f'v_cvt_pk_bf16_f32 v{TT+8}, v{AO}, v{AO+1}\nv_cvt_pk_bf16_f32 v{TT+9}, v{AO+2}, v{AO+3}')
    k(f'buffer_store_dwordx2 {vr(TT+8,2)}, v{vX}, {OR_}, s23 offen')
    k(f's_add_u32 s{sS}, s{sS}, 6\ns_cmp_lt_u32 s{sS}, 64\ns_cbranch_scc1 W_loop')
```
